```python
import torch

def _softmax(x, axis=-1):
    return torch.softmax(x, dim=axis)
def _gelu(x):
    return torch.nn.functional.gelu(x, approximate="tanh")
def _silu(x):
    return torch.nn.functional.silu(x)
def _sigmoid(x):
    return torch.sigmoid(x)
def _layernorm(x, axis=-1, eps=1e-5):
    m = x.mean(dim=axis, keepdim=True)
    v = x.var(dim=axis, keepdim=True, unbiased=False)
    return (x - m) / torch.sqrt(v + eps)
def _scatter_add(tgt, idx, src, axis=0):
    return tgt.clone().index_add_(axis, idx, src)
def _segment_sum(src, seg, n):
    out = torch.zeros((n,) + src.shape[1:], dtype=src.dtype)
    return out.index_add_(0, seg, src)
def _pad(x, pw):
    flat = tuple(v for pair in reversed(pw) for v in pair)
    return torch.nn.functional.pad(x, flat)

kernel_name = 'interleave_layers__spectral_gfnet__mixer_channel_mlp__prompt'

def setup_inputs():

    _w = (lambda a: (lambda t: t.to(torch.bfloat16) if t.is_floating_point() else t)(torch.as_tensor(a)))
    def _A_setup():
        B, S, D = 1, 2048, 448
        Df = D // 2 + 1
        return {
            "x": _w((lambda *s: torch.randn(*s, dtype=torch.bfloat16) * 0.05)(B, S, D)),
            "w_r": _w((lambda *s: torch.randn(*s, dtype=torch.bfloat16) * 0.8)(S, Df) * 0.02),
            "w_i": _w((lambda *s: torch.randn(*s, dtype=torch.bfloat16) * 0.8)(S, Df) * 0.02),
        }
    _A_in = _A_setup()

    def _B_setup():
        B, S, D, F = 1, 2048, 448, 1792
        return {
            "x": _w((lambda *s: torch.randn(*s, dtype=torch.bfloat16) * 0.05)(B, S, D)),
            "w1": _w((lambda *s: torch.randn(*s, dtype=torch.bfloat16) * 0.8)(D, F) * (D ** -0.5)),
            "b1": _w((lambda *s: torch.randn(*s, dtype=torch.bfloat16) * 0.4)(F)),
            "w2": _w((lambda *s: torch.randn(*s, dtype=torch.bfloat16) * 0.05)(F, D) * (F ** -0.5)),
            "b2": _w((lambda *s: torch.randn(*s, dtype=torch.bfloat16) * 0.05)(D)),
        }
    _B_in = _B_setup()

    return {
        "A_x": _A_in["x"],
        "A_w_r": _A_in["w_r"],
        "A_w_i": _A_in["w_i"],
        "B_x": _B_in["x"],
        "B_w1": _B_in["w1"],
        "B_b1": _B_in["b1"],
        "B_w2": _B_in["w2"],
        "B_b2": _B_in["b2"],
    }

def reference(A_x, A_w_r, A_w_i, B_x, B_w1, B_b1, B_w2, B_b2):
    def _A_ref(x, w_r, w_i):
        B, S, D = x.shape
        X = (lambda x, axes=(-2,-1): torch.fft.rfft2(x.float(), dim=axes))(x, axes=(-2, -1))
        W = w_r + 1j * w_i
        X = X * W
        y = (lambda x, s, axes=(-2,-1): torch.fft.irfft2(x, s=s, dim=axes).to(torch.bfloat16))(X, (S, D), axes=(-2, -1))
        return y

    def _B_ref(x, w1, b1, w2, b2):
        y = _layernorm(x, axis=-1)
        h = _gelu(torch.einsum("bsd,df->bsf", y, w1) + b1)
        return torch.einsum("bsf,fd->bsd", h, w2) + b2

    x = A_x
    x = x + _A_ref(_layernorm(x, axis=-1), A_w_r, A_w_i)
    x = x + _B_ref(_layernorm(x, axis=-1), B_w1, B_b1, B_w2, B_b2)
    x = x + _A_ref(_layernorm(x, axis=-1), A_w_r, A_w_i)
    x = x + _B_ref(_layernorm(x, axis=-1), B_w1, B_b1, B_w2, B_b2)
    return x
```

```python
import re

REG_RE = re.compile(r'(?<![\w.])([vas])(?:(\d+)|\[(\d+):(\d+)\])(?![\w])')
TRANS = ('v_exp_f32', 'v_log_f32', 'v_rcp_f32', 'v_rsq_f32', 'v_sqrt_f32', 'v_sin_f32', 'v_cos_f32', 'v_rcp_iflag_f32')

def regs_of(tok):
    out = []
    for m in REG_RE.finditer(tok):
        k = m.group(1)
        if m.group(2) is not None:
            out.append((k, int(m.group(2))))
        else:
            out += [(k, i) for i in range(int(m.group(3)), int(m.group(4)) + 1)]
    t = tok.strip()
    if re.search(r'\bvcc\b', t): out += [('s', 106), ('s', 107)]
    if re.search(r'\bvcc_lo\b', t): out += [('s', 106)]
    if re.search(r'\bvcc_hi\b', t): out += [('s', 107)]
    if re.search(r'\bexec\b', t): out += [('s', 126), ('s', 127)]
    if re.search(r'\bm0\b', t): out += [('s', 124)]
    return out

def split_ops(s):
    ops, depth, cur = [], 0, ''
    for ch in s:
        if ch in '[(': depth += 1
        if ch in '])': depth -= 1
        if ch == ',' and depth == 0:
            ops.append(cur.strip()); cur = ''
        else:
            cur += ch
    if cur.strip(): ops.append(cur.strip())
    return ops

class Ins:
    def __init__(self, text, tag=None):
        self.text = text.strip(); self.tag = tag
        p = self.text.split(None, 1)
        self.op = p[0]; rest = p[1] if len(p) > 1 else ''
        rest = rest.split(';')[0]
        self.ops = split_ops(rest)
        op = self.op
        self.defs, self.uses = [], []
        R = [regs_of(o) for o in self.ops]
        allr = [r for x in R for r in x]
        self.kind = 'other'
        self.lds_dma = False
        if op.startswith(('buffer_load', 'global_load')):
            self.kind = 'vmem'
            if re.search(r'\blds\b', rest) or '_lds_' in op:
                self.lds_dma = True; self.uses = allr + [('s', 124)]
            else:
                self.defs = R[0]; self.uses = [r for x in R[1:] for r in x]
        elif op.startswith(('buffer_store', 'global_store', 'buffer_atomic', 'global_atomic')):
            self.kind = 'vmem'; self.uses = allr
            self.store_data = R[0] if op.startswith('buffer') else R[1]
        elif op.startswith('ds_read') or op.startswith('ds_bpermute') or op.startswith('ds_permute') or op.startswith('ds_swizzle'):
            self.kind = 'ds'; self.defs = R[0]; self.uses = [r for x in R[1:] for r in x]
        elif op.startswith('ds_'):
            self.kind = 'ds'; self.uses = allr
        elif op.startswith(('s_load', 's_buffer_load', 's_memtime', 's_memrealtime')):
            self.kind = 'smem'; self.defs = R[0]; self.uses = [r for x in R[1:] for r in x]
        elif op.startswith('v_mfma'):
            self.kind = 'mfma'; self.defs = R[0]; self.uses = R[1] + R[2] + R[3]
            self.A, self.B, self.C = R[1], R[2], R[3]
            self.passes = 8 if '32x32' in op else 4
        elif op.startswith('v_'):
            self.kind = 'valu'
            if op.startswith(('v_swap', 'v_permlane16_swap', 'v_permlane32_swap')):
                self.defs = allr; self.uses = allr
            elif op.startswith(('v_add_co', 'v_sub_co', 'v_addc_co', 'v_subb_co', 'v_subrev_co', 'v_mad_u64', 'v_div_scale')):
                self.defs = R[0] + R[1]; self.uses = [r for x in R[2:] for r in x]
            elif op.startswith(('v_fmac', 'v_dot2c', 'v_pk_fmac', 'v_writelane')) :
                self.defs = R[0]; self.uses = allr
            elif op == 'v_nop':
                pass
            else:
                self.defs = R[0]; self.uses = [r for x in R[1:] for r in x]
            self.trans = op.replace('_e32', '').replace('_e64', '') in TRANS
            self.dpp = bool(re.search(r'\b(row_shr|row_shl|row_ror|quad_perm|row_bcast|row_mirror|row_half_mirror|wave_shr|wave_shl|row_newbcast)', rest)) or op.endswith('_dpp')
            if self.dpp: self.uses = self.uses + R[0]
            self.opsel = ('op_sel' in rest and not op.startswith('v_pk_')) or 'dst_sel' in rest
        elif op.startswith('s_'):
            self.kind = 'salu'
            if op.startswith(('s_cmp', 's_cbranch', 's_branch', 's_barrier', 's_waitcnt', 's_nop', 's_endpgm', 's_setprio', 's_sleep', 's_bitcmp', 's_setpc')):
                self.uses = allr
            elif 'saveexec' in op:
                self.defs = R[0] + [('s', 126), ('s', 127)]; self.uses = [r for x in R[1:] for r in x]
            else:
                self.defs = R[0]; self.uses = [r for x in R[1:] for r in x]
        self.wide_store = self.kind == 'vmem' and hasattr(self, 'store_data') and ('x4' in op or 'x3' in op)

class Block:
    def __init__(self):
        self.out = []
        self.hist = []
        self.alts = []
        self.vm = []
        self.lg = []
        self.maxv = -1; self.maxa = -1; self.maxs = -1
    def raw(self, text):
        self.out.append(text)
    def label(self, name):
        self.out.append(name + ':')
    def comment(self, t):
        self.out.append('    ; ' + t)
    def _emit(self, ins, states=1):
        self.out.append('    ' + ins.text)
        self.hist.append((ins, states))
        if len(self.hist) > 40: self.hist.pop(0)
        for h in self.alts: h[0].append((ins, states)); h[1] += states
        self.alts = [h for h in self.alts if h[1] < 24]
        for k, i in ins.defs + ins.uses:
            if k == 'v': self.maxv = max(self.maxv, i)
            if k == 'a': self.maxa = max(self.maxa, i)
            if k == 's' and i < 102: self.maxs = max(self.maxs, i)
    def nop(self, n):
        while n > 0:
            c = min(n, 16)
            self._emit(Ins(f's_nop {c-1}'), c); n -= c
    def _wait(self, vm=None, lg=None):
        parts = []
        if vm is not None:
            vm = min(vm, 63)
            if len(self.vm) > vm:
                parts.append(f'vmcnt({vm})'); self.vm = self.vm[len(self.vm) - vm:] if vm else []
        if lg is not None:
            lg = min(lg, 15)
            if len(self.lg) > lg:
                parts.append(f'lgkmcnt({lg})'); self.lg = self.lg[len(self.lg) - lg:] if lg else []
        if parts:
            self._emit(Ins('s_waitcnt ' + ' '.join(parts)))
    def wait_vm_tag(self, tag):
        idx = [i for i, x in enumerate(self.vm) if x.tag == tag]
        if idx: self._wait(vm=len(self.vm) - 1 - idx[-1])
    def wait_vm(self, n=0): self._wait(vm=n)
    def wait_lg(self, n=0): self._wait(lg=n)
    def barrier(self, lg=True):
        if lg: self._wait(lg=0)
        self._emit(Ins('s_barrier'))
    def opt_begin(self):
        return (list(self.vm), list(self.lg), list(self.hist))
    def opt_end(self, st):
        self.vm = list(st[0]); self.lg = list(st[1]); self.alts.append([list(st[2]), 0])
    def _need(self, ins):
        return max([self._need1(ins, self.hist)] + [self._need1(ins, h[0]) for h in self.alts])
    def _need1(self, ins, hist):
        need = 0
        dist = 0
        U = set(ins.uses); D = set(ins.defs)
        for prev, st in reversed(hist):
            req = 0
            PD = set(prev.defs)
            if prev.kind == 'valu':
                vd = {r for r in PD if r[0] in 'va'}; sd = {r for r in PD if r[0] == 's'}
                if ins.kind == 'mfma' and vd & U: req = max(req, 2)
                if ins.kind == 'mfma' and (('s', 126) in sd): req = max(req, 4)
                if ins.kind == 'valu':
                    if prev.trans and (vd & U): req = max(req, 1)
                    if prev.opsel and (vd & (U | D)): req = max(req, 1)
                    if sd & U: req = max(req, 4 if ins.op.startswith(('v_readlane', 'v_writelane', 'v_div_fmas')) else 2)
                    if ins.op.startswith(('v_readlane', 'v_readfirstlane')) and vd & U: req = max(req, 1)
                    if ins.dpp and vd & U: req = max(req, 2)
                    if ins.op.startswith('v_permlane') and vd & U: req = max(req, 2)
                    if ins.op.startswith('v_dot') is False and prev.op.startswith('v_dot') and vd & (U | D): req = max(req, 3)
                    if ins.op.startswith('v_dot') and prev.op.startswith('v_dot') and vd & set(r for x in ins.ops[1:3] for r in regs_of(x)): req = max(req, 3)
                if ins.kind == 'vmem' and sd & U: req = max(req, 5)
                if ins.kind == 'salu' and sd & U: req = max(req, 1)
                if ins.kind in ('vmem', 'ds') and prev.op.startswith('v_dot') and vd & U: req = max(req, 3)
                if ins.kind in ('vmem', 'ds') and prev.trans and vd & U: req = max(req, 1)
            if prev.kind == 'mfma':
                p = prev.passes
                big = 8 if p == 4 else 12
                if ins.kind == 'mfma':
                    if PD & set(ins.A + ins.B): req = max(req, big)
                    if PD & set(ins.C):
                        if not (ins.C == prev.defs and ins.passes == p): req = max(req, p + 2)
                    elif PD & D: req = max(req, p + 2)
                elif ins.kind in ('valu', 'vmem', 'ds'):
                    if PD & (U | D): req = max(req, big)
                    if ins.kind == 'valu' and set(prev.C) & D: req = max(req, p - 1)
            if prev.kind == 'vmem' and prev.wide_store:
                if set(prev.store_data) & D: req = max(req, 2)
            if prev.kind == 'salu' and ('s', 124) in PD and ('s', 124) in U and ins.kind in ('vmem', 'ds'): req = max(req, 1)
            if req > dist: need = max(need, req - dist)
            dist += st
            if dist >= 20: break
        return need
    def I(self, text, tag=None):
        ins = Ins(text, tag)
        touched = set(ins.uses) | set(ins.defs)
        vmn = None
        for i, x in enumerate(self.vm):
            if set(x.defs) & touched: vmn = len(self.vm) - 1 - i
        lgn = None
        has_smem = any(x.kind == 'smem' for x in self.lg)
        for i, x in enumerate(self.lg):
            if set(x.defs) & touched: lgn = 0 if has_smem else len(self.lg) - 1 - i
        self._wait(vmn, lgn)
        n = self._need(ins)
        if n: self.nop(n)
        self._emit(ins)
        if ins.kind == 'vmem': self.vm.append(ins)
        if ins.kind in ('ds', 'smem'): self.lg.append(ins)
        return ins
    def text(self):
        return '\n'.join(self.out) + '\n'

def vr(a, n=1, k='v'):
    return f'{k}{a}' if n == 1 else f'{k}[{a}:{a+n-1}]'
def sr(a, n=1): return vr(a, n, 's')
def ar(a, n=1): return vr(a, n, 'a')
import struct
def f32hex(x): return '0x%08x' % struct.unpack('<I', struct.pack('<f', x))[0]

def kernel_text(name, body, nv, na=0, ns=96):
    acc = (nv + 3) // 4 * 4
    tot = acc + na if na else nv
    return f"""
.text
.globl {name}
.p2align 8
.type {name},@function
{name}:
{body}
.section .rodata,"a"
.p2align 6
.amdhsa_kernel {name}
  .amdhsa_next_free_vgpr {tot}
  .amdhsa_next_free_sgpr {ns}
  .amdhsa_accum_offset {acc}
  .amdhsa_group_segment_fixed_size 0
  .amdhsa_kernarg_size 88
  .amdhsa_user_sgpr_count 2
  .amdhsa_user_sgpr_kernarg_segment_ptr 1
  .amdhsa_system_sgpr_workgroup_id_x 1
.end_amdhsa_kernel
"""
```

```python
import sys, math, struct
import numpy as np
from asmlib import *

KNAME = "interleave_layers__spectral_gfnet__mixer_channel_mlp__prompt_kernel"
S, D, F = 2048, 448, 1792
BS = 57344
XSZ = 32 * BS
WSZ = 1792 * 448 * 2
HSZ = 2048 * 1792 * 2
XC0 = 0; WT = XSZ; XC1 = 2 * XSZ; XC2 = 3 * XSZ; XC3 = 4 * XSZ
W1P = 5 * XSZ
W2P = W1P + WSZ
W2T = W2P + WSZ
H1 = W2T + WSZ
H2 = H1 + HSZ
RES = H2 + HSZ
SSQ0 = RES + 2 * XSZ
SSQ2 = SSQ0 + 7 * 8192
RSP1 = SSQ2 + 7 * 8192
RSP3 = RSP1 + 32 * 3584
B2P = SSQ2 + 32 * 12288
FLG = B2P + 4096
def FL(t): return FLG + t * 32768
ARR = FLG + 4 * 32768
STAMP = 64 << 20
WS_BYTES = 268435456
EPS = 1e-5
STAMPS = '--stamps' in sys.argv
def opt(name, d):
    for a in sys.argv:
        if a.startswith(f'--{name}='): return int(a.split('=')[1])
    return d
W0 = opt('w0', 3)
H0 = opt('h0', 4)
FORCE_SC = opt('fsc', 0)
PFP = opt('pfp', 0)
NX1 = opt('nx1', 9)
MF = "v_mfma_f32_16x16x32_bf16"
L_W1 = 0
L_R0 = 57344
L_R1 = L_R0 + 49152
L_X = L_R1
LDS_BYTES = L_R1 + 57344
L_SQ = L_R1 + 55296
L_Q = L_R1 + 40960
WS, DBG, T1, T2, T3 = 28, 32, 36, 40, 44
XS = DBG
O1, O2 = 64, 80
SW, SBUD, SB, SJ, SX, SI, SQ = 26, 27, 48, 49, 50, 51, 52
ACC = 16
TF1, TF2, TTW, TWW = 192, 208, 224, 240
FR = 252
GA = 2 * 0.7978845608028654
GELU_A = -GA * math.log2(math.e)
GELU_B = -GA * 0.044715 * math.log2(math.e)

def bf16bits(a):
    a = np.ascontiguousarray(a, dtype=np.float32); u = a.view(np.uint32)
    return ((u + 0x7FFF + ((u >> 16) & 1)) >> 16).astype(np.uint16)
def f64w(x):
    lo, hi = struct.unpack('<II', struct.pack('<d', x)); return '0x%08x' % lo, '0x%08x' % hi
def S4(s): return f"s[{s}:{s+3}]"

slow_blocks = []
stamp_n = [0]
stamp_names = []
def stamp(b, name="?"):
    if not STAMPS: return
    b.I("s_memtime s[100:101]" if '--clk' in sys.argv else "s_memrealtime s[100:101]")
    b.I(f"v_writelane_b32 v255, s100, {stamp_n[0]}")
    stamp_n[0] += 1
    stamp_names.append(name)
    assert stamp_n[0] <= 60
def stamp_flush(b):
    if not STAMPS: return
    b.wait_vm(0)
    stamp(b, "end")
    b.I("s_lshl_b32 s53, s2, 2"); b.I(f"s_add_u32 s53, s53, s{SW}"); b.I("s_lshl_b32 s53, s53, 8"); b.I(f"s_add_u32 s53, s53, {STAMP}")
    b.I("s_mov_b64 exec, -1")
    b.I(f"v_writelane_b32 v255, s{SBUD}, 63")
    b.I("v_lshrrev_b32 v3, 2, v2")
    b.I(f"buffer_store_dword v255, v3, {S4(WS)}, s53 offen")

def srd(b, s, base_lo, off, size):
    if off is None or off == 0:
        b.I(f"s_mov_b32 s{s}, s{base_lo}"); b.I(f"s_mov_b32 s{s+1}, s{base_lo+1}")
    else:
        b.I(f"s_add_u32 s{s}, s{base_lo}, {off}"); b.I(f"s_addc_u32 s{s+1}, s{base_lo+1}, 0")
    b.I(f"s_mov_b32 s{s+2}, {size}"); b.I(f"s_mov_b32 s{s+3}, 0x20000")
def tab_srd(b, s, sym, off, size):
    b.I(f"s_getpc_b64 s[{s}:{s+1}]")
    b.I(f"s_add_u32 s{s}, s{s}, {sym}@rel32@lo+4")
    b.I(f"s_addc_u32 s{s+1}, s{s+1}, {sym}@rel32@hi+12")
    if off is not None:
        b.I(f"s_add_u32 s{s}, s{s}, {off}"); b.I(f"s_addc_u32 s{s+1}, s{s+1}, 0")
    b.I(f"s_mov_b32 s{s+2}, {size}"); b.I(f"s_mov_b32 s{s+3}, 0x20000")
def div7(b, q, r, x):
    b.I(f"s_mul_i32 s{q}, s{x}, 293"); b.I(f"s_lshr_b32 s{q}, s{q}, 11")
    b.I(f"s_mul_i32 s{r}, s{q}, 7"); b.I(f"s_sub_u32 s{r}, s{x}, s{r}")
def s0_of_B(b, dst, B, t1):
    b.I(f"s_lshr_b32 s{dst}, s{B}, 3"); b.I(f"s_lshl_b32 s{dst}, s{dst}, 9")
    b.I(f"s_and_b32 s{t1}, s{B}, 4"); b.I(f"s_lshl_b32 s{t1}, s{t1}, 2"); b.I(f"s_add_u32 s{dst}, s{dst}, s{t1}")
    b.I(f"s_and_b32 s{t1}, s{B}, 3"); b.I(f"s_lshl_b32 s{t1}, s{t1}, 7"); b.I(f"s_add_u32 s{dst}, s{dst}, s{t1}")

def emit(b, x):
    if callable(x): x(b)
    elif isinstance(x, tuple): b.I(x[0], tag=x[1])
    else: b.I(x)
def interleave(b, mf, fill, lead=0):
    n = len(mf) - lead
    k = 0
    for i, m in enumerate(mf):
        emit(b, m)
        if i >= lead:
            tgt = (len(fill) * (i - lead + 1) + n - 1) // n
            while k < tgt: emit(b, fill[k]); k += 1
    while k < len(fill): emit(b, fill[k]); k += 1

def mf16(acc, ra, rb, first, ka='v', kb='v', ms=range(4), ts=range(4), tx=0):
    out = []
    for m in ms:
        for t in ts:
            a = vr(acc + (m*4+(t^tx))*4, 4)
            out.append(f"{MF} {a}, {vr(ra+4*m,4,ka)}, {vr(rb+4*t,4,kb)}, {'0' if first else a}")
    return out

def retry_parts(name, test, reload_, window_tags=(), cond="vccnz"):
    def fin(b):
        b.I(f"s_cbranch_{cond} L_slow_{name}")
        b.label(f"L_back_{name}")
        sb = Block(); sb.label(f"L_slow_{name}")
        sb.I(f"s_sub_u32 s{SBUD}, s{SBUD}, 1")
        sb.I(f"s_cbranch_scc1 L_give_{name}")
        sb.I("s_sleep 1")
        reload_(sb)
        for t in test: sb.I(t)
        sb.I(f"s_cbranch_{cond} L_slow_{name}")
        need = None; foreign = False
        for x in reversed(b.vm):
            if x.tag in window_tags:
                if foreign: need = x.tag; break
            else: foreign = True
        if need is not None: sb.wait_vm_tag(need)
        sb.I(f"s_branch L_back_{name}")
        sb.label(f"L_give_{name}")
        sb.I(f"s_mov_b32 s{SBUD}, 0")
        sb.I("s_waitcnt vmcnt(0)")
        sb.I(f"s_branch L_back_{name}")
        slow_blocks.append(sb)
    return list(test) + [fin]
def retry(b, *a, **k):
    for x in retry_parts(*a, **k): emit(b, x)
def gaps(b, mf, g):
    for i, m in enumerate(mf):
        b.I(m)
        for x in g.get(i, []): emit(b, x)

def lds_addrs(b, base, va):
    for m in range(4):
        if m: b.I(f"v_xor_b32 v{va+m}, {m}, v1")
        b.I(f"v_mul_u32_u24 v{va+m}, {12*1024}, v{va+m if m else 1}")
        b.I(f"v_add3_u32 v{va+m}, v{va+m}, v2, s53")
def reduce4(b, base, tmp, va, mode='m', mid=None):
    b.I(f"s_mov_b32 s53, {base}")
    lds_addrs(b, base, va)
    for o in range(1, 4):
        for u in range(4):
            src = ACC + ((o*4+u) if mode != 't' else (u*4+o)) * 4
            slot = (o-1)*4 + (u ^ o if mode == 'c' else u)
            b.I(f"ds_write_b128 v{va+o}, {vr(src,4)} offset:{slot*1024}")
    if mid: mid(b)
    b.barrier()
    for i in range(12): b.I(f"ds_read_b128 {vr(tmp+4*i,4)}, v{va} offset:{i*1024}")
    for o in range(3):
        for u in range(4):
            own = ACC + (u if mode != 't' else u*4) * 4
            for h in range(2):
                a = vr(own + 2*h, 2)
                b.I(f"v_pk_add_f32 {a}, {a}, {vr(tmp+(o*4+u)*4+2*h,2)}")


def wave0(b, name, fn):
    b.I(f"s_cmp_lg_u32 s{SW}, 0")
    b.I(f"s_cbranch_scc1 L_{name}")
    st = b.opt_begin()
    fn(b)
    b.opt_end(st)
    b.label(f"L_{name}")
def emit_all(b, xs):
    for x in xs: emit(b, x)
def dbg_issue(blk):
    blk.I("s_mov_b64 exec, 15")
    blk.I(f"buffer_load_dword v{FR}, v147, {S4(DBG)}, 0 offen sc1", tag="poll")
    blk.I("s_mov_b64 exec, -1")
def arrive(b, name, nafter):
    def f(blk):
        blk.raw(f"    s_waitcnt vmcnt({nafter})")
        retry(blk, name + "r", [f"v_cmp_ne_u32 vcc, 1, v{FR}"], lambda q: (q.I("s_sleep 2"), dbg_issue(q)))
        blk.I("v_mov_b32 v146, s99")
        blk.I("s_mov_b64 exec, 1")
        blk.I(f"buffer_store_dword v146, off, {S4(WS)}, s98 sc1")
        blk.I("s_mov_b64 exec, -1")
    wave0(b, name, f)
def flag_set(b, name, soff):
    def f(blk):
        blk.I("v_mov_b32 v14, 1"); blk.I("v_mov_b32 v15, 0")
        blk.I("s_mov_b64 exec, 1")
        blk.I(f"buffer_store_dword v14, v15, {S4(WS)}, {soff} offen sc1")
        blk.I("s_mov_b64 exec, -1")
    wave0(b, name, f)
def flag_issue(soff, n=32):
    def f(blk):
        blk.I("s_mov_b32 exec_hi, 0" if n == 32 else f"s_mov_b64 exec, {(1 << n) - 1}")
        blk.I(f"buffer_load_dword v{FR}, v0, {S4(WS)}, {soff} offen sc1", tag="poll")
        blk.I("s_mov_b64 exec, -1")
    return f
def flag_parts(name, soff, n=32):
    return retry_parts(name, [f"v_cmp_ne_u32 vcc, 1, v{FR}"], flag_issue(soff, n))
def flag_check(b, *a):
    for x in flag_parts(*a): emit(b, x)

INV448 = 1.0 / 448
AMP = math.sqrt(2.0 / 448)
def qgen(b):
    C, TH, K2, PH, AM, DD, Y, O = 16, 20, 24, 28, 32, 36, 40, 72
    b.I("v_and_b32 v9, 1, v3")
    b.I("v_lshrrev_b32 v10, 2, v3"); b.I("v_and_b32 v11, 2, v3"); b.I("v_lshl_add_u32 v10, v11, 1, v10")
    b.I(f"s_lshl_b32 s53, s{SJ}, 5"); b.I("v_add_u32 v10, s53, v10")
    b.I("v_cvt_f32_u32 v11, v9"); b.I("v_mul_f32 v11, 0.25, v11" if False else f"v_mul_f32 v11, {f32hex(0.25)}, v11")
    b.I("v_mul_u32_u24 v9, 224, v9"); b.I("v_sub_u32 v9, 224, v9")
    b.I(f"v_mov_b32 v12, {f32hex(AMP)}"); b.I(f"v_mov_b32 v13, {f32hex(AMP / math.sqrt(2))}")
    b.I(f"s_mov_b32 s56, {f32hex(INV448)}"); b.I(f"s_mov_b32 s57, {f32hex(-448.0)}")
    for m in range(4):
        k = 2 * (m & 1) + (m >> 1)
        b.I(f"v_xor_b32 v{C+k}, {m}, v1"); b.I(f"v_lshl_add_u32 v{C+k}, v{C+k}, 3, v10")
        b.I(f"v_cmp_eq_u32 vcc, 0, v{C+k}")
        b.I(f"v_cndmask_b32 v{C+k}, v{C+k}, v9, vcc"); b.I(f"v_cvt_f32_u32 v{C+k}, v{C+k}")
        b.I(f"v_cndmask_b32 v{PH+k}, v11, 0, vcc"); b.I(f"v_cndmask_b32 v{AM+k}, v12, v13, vcc")
        b.I(f"v_mul_f32 v{TH+k}, s56, v{C+k}"); b.I(f"v_cos_f32 v{K2+k}, v{TH+k}")
    for k in range(4): b.I(f"v_add_f32 v{K2+k}, v{K2+k}, v{K2+k}")
    b.I(f"s_mov_b32 s58, s{SW}"); b.I(f"s_lshr_b32 s59, s{SW}, 1"); b.I("s_add_u32 s59, s59, 12"); b.I("s_mov_b32 s60, 4")
def qgen_loop(b):
    C, TH, K2, PH, AM, DD, Y, O = 16, 20, 24, 28, 32, 36, 40, 72
    b.nop(2)
    b.label("L_qgen")
    P2 = lambda r, p: vr(r + 2*p, 2)
    y = lambda p, i: vr(Y + 16*p + 2*i, 2)
    b.I("s_lshl_b32 s53, s58, 5"); b.I(f"v_lshl_add_u32 v{DD}, v4, 3, s53"); b.I(f"v_cvt_f32_u32 v{DD}, v{DD}")
    b.I("s_lshl_b32 s53, s58, 12")
    for p in range(2): b.I(f"v_pk_mul_f32 {y(p,2)}, {P2(C,p)}, {vr(DD,2)} op_sel_hi:[1,0]")
    for p in range(2): b.I(f"v_pk_mul_f32 {y(p,3)}, {y(p,2)}, s[56:57] op_sel_hi:[1,0]")
    for p in range(2):
        for h in range(2): b.I(f"v_rndne_f32 v{Y+16*p+6+h}, v{Y+16*p+6+h}")
    for p in range(2): b.I(f"v_pk_fma_f32 {y(p,2)}, {y(p,3)}, s[56:57], {y(p,2)} op_sel:[0,1,0] op_sel_hi:[1,1,1]")
    for p in range(2): b.I(f"v_pk_fma_f32 {y(p,0)}, {y(p,2)}, s[56:57], {P2(PH,p)} op_sel_hi:[1,0,1]")
    for p in range(2): b.I(f"v_pk_add_f32 {y(p,1)}, {y(p,0)}, {P2(TH,p)}")
    for p in range(2):
        for h in range(4): b.I(f"v_cos_f32 v{Y+16*p+h}, v{Y+16*p+h}")
    for m in range(4): b.I(f"v_add_u32 v{10+m}, s53, v{5+m}")
    for i in range(2):
        for p in range(2): b.I(f"v_pk_mul_f32 {y(p,i)}, {y(p,i)}, {P2(AM,p)}")
    for i in range(2, 8):
        for p in range(2): b.I(f"v_pk_fma_f32 {y(p,i)}, {P2(K2,p)}, {y(p,i-1)}, {y(p,i-2)} neg_lo:[0,0,1] neg_hi:[0,0,1]")
    for p in range(2):
        for h in range(2):
            for i in range(4): b.I(f"v_cvt_pk_bf16_f32 v{O+4*h+i}, v{Y+16*p+4*i+h}, v{Y+16*p+4*i+2+h}")
            b.I(f"ds_write_b128 v{10+p+2*h}, {vr(O+4*h,4)} offset:{L_W1}")
    b.I("s_add_u32 s58, s58, 4"); b.I("s_min_u32 s58, s58, s59")
    b.I("s_sub_u32 s60, s60, 1"); b.I("s_cmp_lg_u32 s60, 0"); b.I("s_cbranch_scc1 L_qgen")
def coltab(t):
    o = []
    A, Bs, SG, P = t, t + 1, t + 2, t + 4
    def frag(dst, sgn):
        r = []
        for e in range(8): r.append(f"v_fmamk_f32 v{P+e}, v{A}, {f32hex(16*(e >> 2) + (e & 3))}, v{Bs}")
        for e in range(8): r.append(f"v_sin_f32 v{P+8+e}, v{P+e}")
        for e in range(8): r.append(f"v_cos_f32 v{P+e}, v{P+e}")
        for fn in (1, 0):
            for i in range(4): r.append(f"v_cvt_pk_bf16_f32 v{dst+8*fn+i}, v{P+8*fn+2*i}, v{P+8*fn+2*i+1}")
        for fn in (1, 0):
            for i in range(4): r.append(f"v_xor_b32 v{dst+8*fn+4+i}, {sgn}, v{dst+8*fn+i}")
        return r
    o += [f"v_cvt_f32_u32 v{t+3}, v4", f"v_cvt_f32_u32 v{A}, v3", f"v_mul_f32 v{A}, {f32hex(1/32)}, v{A}", f"v_mul_f32 v{t+3}, 4.0, v{t+3}", f"v_mul_f32 v{Bs}, v{A}, v{t+3}"]
    o += frag(TF2, "0x80000000")
    o += [f"v_lshl_add_u32 v{A}, v1, 4, v3", f"v_cvt_f32_u32 v{A}, v{A}", f"v_mul_f32 v{A}, {f32hex(1/64)}, v{A}", f"v_mul_f32 v{Bs}, v{A}, v{t+3}",
          f"v_and_b32 v{SG}, 1, v3", f"v_mul_u32_u24 v{SG}, 0x8000, v{SG}", f"v_lshl_or_b32 v{SG}, v{SG}, 16, v{SG}"]
    o += frag(TF1, f"v{SG}")
    o += [f"v_mul_f32 v{A}, {f32hex(1/32)}, v{A}", f"v_mul_f32 v{Bs}, {f32hex(1/32)}, v{Bs}"]
    o += [f"v_fmamk_f32 v{P+e}, v{A}, {f32hex(16*(e >> 2) + (e & 3))}, v{Bs}" for e in range(8)]
    o += [f"v_cos_f32 v{TTW+e}, v{P+e}" for e in range(8)] + [f"v_sin_f32 v{TTW+8+e}, v{P+e}" for e in range(8)]
    return o
def qtgen(t):
    DV, GD, SP, AD, P, Qn, Sn, O = t, t + 1, t + 2, t + 3, t + 4, t + 8, t + 12, t + 16
    E = int(bf16bits(np.array([1 / math.sqrt(448)]))[0])
    o = [f"v_lshrrev_b32 v{DV}, 2, v3", f"v_and_b32 v{GD}, 3, v3", f"v_lshl_add_u32 v{DV}, v{DV}, 4, v{GD}",
         f"s_lshr_b32 s53, s{SI}, 2", "s_lshl_b32 s53, s53, 6", f"s_and_b32 s55, s{SI}, 3", "s_lshl_b32 s55, s55, 2", "s_add_u32 s53, s53, s55",
         f"v_add_u32 v{DV}, s53, v{DV}", f"v_cvt_f32_u32 v{DV}, v{DV}",
         f"v_and_b32 v{SP}, 1, v3", f"v_lshlrev_b32 v{SP}, 15, v{SP}", f"v_or_b32 v{SP}, {(E << 16) | E}, v{SP}",
         f"v_or_b32 v{GD}, v1, v4", f"v_cmp_eq_u32 s[58:59], 0, v{GD}",
         f"s_mov_b32 s56, {f32hex(INV448)}", f"s_mov_b32 s57, {f32hex(-448.0)}", f"s_mov_b32 s62, {f32hex(AMP)}", f"s_mov_b32 s63, {f32hex(-AMP)}",
         f"s_lshr_b32 s60, s{SI}, 1"]
    for i in range(4):
        Oi = O + 4 * (i & 1)
        o += [f"s_add_u32 s53, s{SW}, {4*i}", "s_min_u32 s53, s53, 13", "s_lshl_b32 s55, s53, 4", f"v_add_u32 v{GD}, s55, v4", f"v_cvt_f32_u32 v{GD}, v{GD}",
              "s_sub_u32 s53, s53, s60", "s_add_u32 s55, s53, 14", "s_cmp_lt_i32 s53, 0", "s_cselect_b32 s53, s55, s53", "s_lshl_b32 s53, s53, 10", f"s_add_u32 s53, s53, {L_Q}",
              f"v_mul_f32 v{P}, v{GD}, v{DV}", f"v_add_u32 v{AD}, s53, v2"]
        o += [f"v_fmamk_f32 v{P+u}, v{DV}, {f32hex(4*u)}, v{P}" for u in range(1, 4)]
        o += [f"v_pk_mul_f32 {vr(Qn+2*h,2)}, {vr(P+2*h,2)}, s[56:57] op_sel_hi:[1,0]" for h in range(2)]
        o += [f"v_rndne_f32 v{Qn+u}, v{Qn+u}" for u in range(4)]
        o += [f"v_pk_fma_f32 {vr(P+2*h,2)}, {vr(Qn+2*h,2)}, s[56:57], {vr(P+2*h,2)} op_sel:[0,1,0] op_sel_hi:[1,1,1]" for h in range(2)]
        o += [f"v_pk_mul_f32 {vr(P+2*h,2)}, {vr(P+2*h,2)}, s[56:57] op_sel_hi:[1,0]" for h in range(2)]
        o += [f"v_cos_f32 v{Qn+u}, v{P+u}" for u in range(4)] + [f"v_sin_f32 v{Sn+u}, v{P+u}" for u in range(4)]
        o += [f"v_pk_mul_f32 {vr(Qn+2*h,2)}, {vr(Qn+2*h,2)}, s[62:63] op_sel_hi:[1,0]" for h in range(2)]
        o += [f"v_pk_mul_f32 {vr(Sn+2*h,2)}, {vr(Sn+2*h,2)}, s[62:63] op_sel:[0,1] op_sel_hi:[1,1]" for h in range(2)]
        o += [f"v_cvt_pk_bf16_f32 v{Oi+u}, v{Qn+u}, v{Sn+u}" for u in range(4)]
        if i == 0: o += [f"v_cndmask_b32 v{Oi}, v{Oi}, v{SP}, s[58:59]"]
        o += [f"ds_write_b128 v{AD}, {vr(Oi,4)}"]
    return o

CX, CSQ = 176, 104
def col_loads(xin, ssq, nparts, sq=CSQ):
    out = [(f"buffer_load_dwordx4 {vr(CX+4*nt,4)}, v{248+nt}, {S4(WS)}, s78 offen sc1", "cx") for nt in range(2)]
    for p in range(nparts):
        if p: out.append(f"s_add_u32 s53, s79, {p*8192}")
        for nt in range(2): out.append((f"buffer_load_dwordx4 {vr(sq+8*p+4*nt,4)}, v2, {S4(WS)}, s{53 if p else 79} offen offset:{1024*nt} sc1", "cx"))
    return out
def col_setup(xin, ssq):
    return [f"s_add_u32 s78, s54, {xin}", f"s_lshl_b32 s79, s{SW}, 11", f"s_add_u32 s79, s79, {ssq}"]
def col_wt():
    return ["s_lshl_b32 s95, s2, 13", f"s_lshl_b32 s53, s{SW}, 11", "s_add_u32 s95, s95, s53", f"s_add_u32 s95, s95, {WT}"] + \
           [(f"buffer_load_dwordx4 {vr(TWW+4*nt,4)}, v2, {S4(WS)}, s95 offen offset:{1024*nt} sc1", "cx") for nt in range(2)]
def col(b, name, xin, xout, ssq, nparts, LB, sq=CSQ, pre_b1=None, post_b1=None, pre_b2=None, post_b2=None, vfill=(), wchk=False):
    X, SQ, RS = CX, sq, 24
    N1, N2 = 48, 56
    T, XR, XI, ZI, ZR = 64, 72, 80, 88, 96
    A, DR, DI, WR, WI, E = 104, 136, 144, 152, 160, 32
    PR, PI, BR, BI = 88, 96, 64, 68
    b.I("s_cmp_eq_u32 s2, 0")
    b.I("s_cselect_b32 s57, 0, 0xffff0000")
    b.I(f"s_cselect_b32 s58, 0, {f32hex(1.0/2048)}")
    b.I(f"s_mov_b32 s59, {f32hex(1.0/2048)}")
    b.I("s_mov_b32 s60, 0x80008000")
    b.I(f"s_mov_b32 s62, {f32hex(1.0/448)}"); b.I(f"s_mov_b32 s63, {f32hex(EPS)}")
    b.I("v_lshrrev_b32 v12, 1, v1"); b.I("v_lshl_add_u32 v12, v12, 10, v2")
    b.I("v_and_b32 v13, 1, v1"); b.I("v_lshl_add_u32 v12, v13, 3, v12"); b.I(f"v_add_u32 v12, {LB}, v12")
    b.I("v_lshlrev_b32 v13, 9, v1"); b.I("v_lshl_add_u32 v13, v3, 5, v13"); b.I("v_lshl_add_u32 v13, v4, 3, v13"); b.I(f"v_add_u32 v13, {LB}, v13")
    LA, LT = 10, 11
    b.I(f"v_add_u32 v{LA}, {LB}, v2")
    b.I(f"v_lshrrev_b32 v{LT}, 1, v2"); b.I(f"v_add_u32 v{LT}, {LB}, v{LT}")
    for i in range(8): b.I(f"v_xor_b32 v{N1+i}, s60, v{TF1+8+i}")
    for i in range(8): b.I(f"v_xor_b32 v{N2+i}, s60, v{TF2+8+i}")
    CK = 16
    test = [f"v_max3_u32 v{CK}, v{X}, v{X+1}, v{X+2}", f"v_max3_u32 v{CK}, v{CK}, v{X+3}, v{X+4}",
            f"v_max3_u32 v{CK}, v{CK}, v{X+5}, v{X+6}", f"v_max_u32 v{CK}, v{CK}, v{X+7}"] + ([f"v_max3_u32 v{CK}, v{CK}, v{TWW}, v{TWW+4}"] if wchk else []) + [f"v_cmp_eq_u32 s[56:57], -1, v{CK}"]
    test = [t.replace("s[56:57]", "s[98:99]") for t in test]
    src = SQ
    for p in range(1, nparts):
        test += [f"v_pk_add_f32 {vr(RS+i,2)}, {vr(src+i,2)}, {vr(SQ+8*p+i,2)}" for i in range(0, 8, 2)]
        src = RS
    test += [f"v_pk_fma_f32 {vr(RS+i,2)}, {vr(src+i,2)}, s[62:63], s[62:63] op_sel:[0,0,1] op_sel_hi:[1,0,1]" for i in range(0, 8, 2)]
    test += [f"v_pk_add_f32 v[18:19], {vr(RS,2)}, {vr(RS+2,2)}", f"v_pk_add_f32 v[20:21], {vr(RS+4,2)}, {vr(RS+6,2)}",
             "v_pk_add_f32 v[18:19], v[18:19], v[20:21]", "v_cmp_u_f32 vcc, v18, v19", "s_or_b64 vcc, vcc, s[98:99]"]
    def rel(blk):
        for x in col_loads(xin, ssq, nparts, sq) + (col_wt()[4:] if wchk else []): emit(blk, x)
    retry(b, name + "x", test, rel, ("cx",), cond="scc1")
    stamp(b, name + "_in")
    for i in range(8): b.I(f"v_rsq_f32 v{RS+i}, v{RS+i}")
    for i in range(8): b.I(f"v_lshlrev_b32 v{XR+i}, 16, v{X+i}")
    for i in range(8): b.I(f"v_and_b32 v{ZI+i}, s57, v{X+i}")
    for i in range(0, 8, 2): b.I(f"v_pk_mul_f32 {vr(ZR+i,2)}, {vr(XR+i,2)}, {vr(RS+i,2)}")
    for i in range(0, 8, 2): b.I(f"v_pk_mul_f32 {vr(ZI+i,2)}, {vr(ZI+i,2)}, {vr(RS+i,2)}")
    for i in range(4): b.I(f"v_cvt_pk_bf16_f32 v{T+i}, v{ZR+2*i}, v{ZR+2*i+1}")
    for i in range(4): b.I(f"v_cvt_pk_bf16_f32 v{T+4+i}, v{ZI+2*i}, v{ZI+2*i+1}")
    for p in range(2):
        for mt in range(2):
            b.I(f"ds_write_b64 v12, {vr(T+4*p+2*mt,2)} offset:{(p*2+mt)*2048}")
    for i in range(8): b.I(f"v_and_b32 v{XI+i}, 0xffff0000, v{X+i}")
    if pre_b1: pre_b1(b)
    b.barrier()
    for i in range(8): b.I(f"ds_read_b128 {vr(A+4*i,4)}, v{LA} offset:{i*1024}")
    if post_b1: post_b1(b)
    real = b
    class Rec:
        def __init__(s_): s_.ops = []
        def I(s_, t, tag=None): s_.ops.append(t)
    b = Rec()
    def Af(p, mt, ks): return vr(A + ((p*2+mt)*2+ks)*4, 4)
    C1 = lambda ks: vr(TF1+4*ks, 4); S1 = lambda ks: vr(TF1+8+4*ks, 4); M1 = lambda ks: vr(N1+4*ks, 4)
    C2 = lambda m: vr(TF2+4*m, 4); S2 = lambda m: vr(TF2+8+4*m, 4); M2 = lambda m: vr(N2+4*m, 4)
    dr = lambda mt: vr(DR+4*mt, 4); di = lambda mt: vr(DI+4*mt, 4)
    mf = []
    for ks in range(2):
        for mt in range(2):
            mf.append(f"{MF} {dr(mt)}, {Af(0,mt,ks)}, {C1(ks)}, {'0' if ks==0 else dr(mt)}")
            mf.append(f"{MF} {di(mt)}, {Af(0,mt,ks)}, {M1(ks)}, {'0' if ks==0 else di(mt)}")
    for ks in range(2):
        for mt in range(2):
            mf.append(f"{MF} {dr(mt)}, {Af(1,mt,ks)}, {S1(ks)}, {dr(mt)}")
            mf.append(f"{MF} {di(mt)}, {Af(1,mt,ks)}, {C1(ks)}, {di(mt)}")
    fill = [f"v_lshlrev_b32 v{WR+i}, 16, v{TWW+i}" for i in range(8)] + [f"v_and_b32 v{WI+i}, 0xffff0000, v{TWW+i}" for i in range(8)]
    interleave(b, mf, fill, lead=4)
    TC, TS = TTW, TTW + 8
    def cmul(ar_, ai_, br_, bi_, conj):
        ng = "neg_lo:[1,0,0] neg_hi:[1,0,0]"
        for i in range(0, 8, 2): b.I(f"v_pk_mul_f32 {vr(PR+i,2)}, {vr(ar_+i,2)}, {vr(br_+i,2)}")
        for i in range(0, 8, 2): b.I(f"v_pk_mul_f32 {vr(PI+i,2)}, {vr(ai_+i,2)}, {vr(br_+i,2)}")
        for i in range(0, 8, 2): b.I(f"v_pk_fma_f32 {vr(PR+i,2)}, {vr(ai_+i,2)}, {vr(bi_+i,2)}, {vr(PR+i,2)} {'' if conj else ng}")
        for i in range(0, 8, 2): b.I(f"v_pk_fma_f32 {vr(PI+i,2)}, {vr(ar_+i,2)}, {vr(bi_+i,2)}, {vr(PI+i,2)} {ng if conj else ''}")
        for i in range(4): b.I(f"v_cvt_pk_bf16_f32 v{BR+i}, v{PR+2*i}, v{PR+2*i+1}")
        for i in range(4): b.I(f"v_cvt_pk_bf16_f32 v{BI+i}, v{PI+2*i}, v{PI+2*i+1}")
    br, bi = vr(BR, 4), vr(BI, 4)
    er = lambda m: vr(E+4*m, 4); ei = lambda m: vr(E+8+4*m, 4)
    cmul(DR, DI, TC, TS, True)
    for m in range(2):
        b.I(f"{MF} {er(m)}, {C2(m)}, {br}, 0"); b.I(f"{MF} {ei(m)}, {M2(m)}, {br}, 0")
    for m in range(2):
        b.I(f"{MF} {er(m)}, {S2(m)}, {bi}, {er(m)}"); b.I(f"{MF} {ei(m)}, {C2(m)}, {bi}, {ei(m)}")
    cmul(E, E + 8, WR, WI, False)
    for m in range(2):
        b.I(f"{MF} {dr(m)}, {C2(m)}, {br}, 0"); b.I(f"{MF} {di(m)}, {S2(m)}, {br}, 0")
    for m in range(2):
        b.I(f"{MF} {dr(m)}, {M2(m)}, {bi}, {dr(m)}"); b.I(f"{MF} {di(m)}, {C2(m)}, {bi}, {di(m)}")
    cmul(DR, DI, TC, TS, False)
    for p in range(2):
        for mt in range(2):
            b.I(f"ds_write_b64 v13, {vr((BR, BI)[p]+2*mt,2)} offset:{8192+(p*2+mt)*2048}")
    interleave(real, b.ops, list(vfill))
    b = real
    if pre_b2: pre_b2(b)
    b.barrier()
    for p in range(2):
        for nt in range(2):
            for ks in range(2):
                for hh in range(2):
                    r = A + ((p*2+nt)*2+ks)*4 + 2*hh
                    b.I(f"ds_read_b64_tr_b16 {vr(r,2)}, v{LT} offset:{8192+(p*2+nt)*2048+(32*ks+16*hh)*32}")
    if post_b2: post_b2(b)
    for ks in range(2):
        for nt in range(2):
            b.I(f"{MF} {er(nt)}, {C1(ks)}, {Af(0,nt,ks)}, {'0' if ks==0 else er(nt)}")
            b.I(f"{MF} {ei(nt)}, {S1(ks)}, {Af(0,nt,ks)}, {'0' if ks==0 else ei(nt)}")
    for ks in range(2):
        for nt in range(2):
            b.I(f"{MF} {er(nt)}, {M1(ks)}, {Af(1,nt,ks)}, {er(nt)}")
            b.I(f"{MF} {ei(nt)}, {C1(ks)}, {Af(1,nt,ks)}, {ei(nt)}")
    b.I(f"s_add_u32 s55, s54, {xout}")
    for nt in range(2):
        for i in range(4*nt, 4*nt+4):
            b.I(f"v_fma_f32 v{XR+i}, v{E+i}, s59, v{XR+i}")
            b.I(f"v_fma_f32 v{XI+i}, v{E+8+i}, s58, v{XI+i}")
        for i in range(4*nt, 4*nt+4):
            b.I(f"v_cvt_pk_bf16_f32 v{T+i}, v{XR+i}, v{XI+i}")
        b.I(f"buffer_store_dwordx4 {vr(T+4*nt,4)}, v{248+nt}, {S4(WS)}, s55 offen sc1", tag="cst")
    stamp(b, name + "_end")

RAW, R1, AF = 80, 8, 208
HRS, R2 = [144, 160, 176, 192, 80, 96], 6
RSV = 240
EA, EQ = 232, 248
def g1_offsets():
    o = [f"s_lshl_b32 s53, s{SX}, 2", f"s_add_u32 s53, s53, s{SW}", f"s_mul_i32 s94, s53, {BS}", f"s_lshr_b32 s55, s{SI}, 1"]
    for s in range(14):
        o += [f"s_lshl_b32 s{O1+s}, s55, 12", f"s_add_u32 s{O1+s}, s{O1+s}, s94", "s_add_u32 s55, s55, 1", "s_cmp_eq_u32 s55, 14", "s_cselect_b32 s55, 0, s55"]
    return o
def g1_loads(s):
    r = RAW + (s % R1) * 16
    return [(f"buffer_load_dwordx4 {vr(r+4*i,4)}, v2, {S4(XS)}, s{O1+s} offen offset:{1024*i} sc1", ("X", s)) for i in range(4)]
def put(g, gap, items, per=1, step=1, last=15):
    for i, x in enumerate(items): g.setdefault(min(gap + (i // per) * step, last), []).append(x)
def rowsum4(Q):
    return [f"v_permlane32_swap_b32 v{Q}, v{Q+2}", f"v_permlane32_swap_b32 v{Q+1}, v{Q+3}", f"v_add_f32 v{Q}, v{Q}, v{Q+2}", f"v_add_f32 v{Q+1}, v{Q+1}, v{Q+3}",
            f"v_permlane16_swap_b32 v{Q}, v{Q+1}", f"v_add_f32 v{Q}, v{Q}, v{Q+1}"]
def g1_pre(rsp):
    return ["s_mov_b32 s4, 0xaaaaaaaa", "s_mov_b32 s5, s4", "s_mov_b32 s6, 0xcccccccc", "s_mov_b32 s7, s6",
            f"s_lshr_b32 s8, s{O1}, 4", f"s_add_u32 s8, s8, {rsp}", "s_lshr_b32 s9, s94, 4", f"s_add_u32 s9, s9, {rsp}",
            f"s_lshr_b32 s53, s{SI}, 1", "v_or_b32 v15, s53, v4", "v_cmp_eq_u32 vcc, 0, v15", "v_mov_b32 v14, 0xffff", "v_cndmask_b32 v15, -1, v14, vcc",
            f"v_add_u32 v14, {L_Q}, v2"]

def g1(b, name, ext, extra):
    wtags = [("X", s) for s in range(14)]
    o = 4 if ext else 0
    def parts(s, hi):
        r = RAW + (s % R1) * 16; a = AF + (s & 1) * 16
        rd = [f"ds_read_b128 {vr(a+4*m,4)}, v2 offset:{(s*4+m)*1024}" for m in range(4)]
        if ext: rd = [f"ds_read_b128 {vr(EQ+4*(s&1),4,'a')}, v14 offset:{s*1024}"] + rd
        def rel(q):
            for s2 in range(s, min(hi, 14)):
                for l in g1_loads(s2): emit(q, l)
        ck = retry_parts(f"{name}_{s}", [f"v_max3_u32 v9, v{r}, v{r+4}, v{r+8}", f"v_max_u32 v9, v9, v{r+12}", "v_cmp_eq_u32 vcc, -1, v9"], rel, wtags)
        sw = [f"v_swap_b32 v{r+4*i+t}, v{r+4*t+i}" for i in range(4) for t in range(i)]
        return rd, ck, sw
    rd, ck, sw = parts(0, W0)
    for x in rd + ck: emit(b, x)
    stamp(b, name + "_first")
    emit_all(b, sw)
    pend = [l for s in range(W0, R1 - 1) for l in g1_loads(s)]
    msk = [f"v_and_b32 v{RAW+4*t}, v15, v{RAW+4*t}" for t in range(4)]
    if not ext: emit_all(b, msk)
    def sel(t): return [f"v_cndmask_b32 v{10+t}, v{240+4*(t&1)}, v{241+4*(t&1)}, s[4:5]", f"v_cndmask_b32 v{240+4*(t&1)}, v{242+4*(t&1)}, v{243+4*(t&1)}, s[4:5]",
                        f"v_cndmask_b32 v{10+t}, v{10+t}, v{240+4*(t&1)}, s[6:7]"]
    def rs_st(blk):
        blk.I("s_mov_b32 exec_lo, 0x00f0000f"); blk.I("s_mov_b32 exec_hi, 0xf0000f00")
        blk.I(f"buffer_store_dwordx4 v[10:13], v250, {S4(WS)}, s8 offen sc1")
        blk.I("s_mov_b64 exec, -1")
    PR, SM = RAW + 6*16, RAW + 7*16
    def rs_ld3(blk):
        blk.I("s_mov_b32 exec_hi, 0")
        blk.I(f"buffer_load_dwordx4 {vr(PR+12,4)}, v2, {S4(WS)}, s9 offen offset:3072 sc1", tag="rs")
        blk.I("s_mov_b64 exec, -1")
    rs_ld = [(f"buffer_load_dwordx4 {vr(PR+4*i,4)}, v2, {S4(WS)}, s9 offen offset:{1024*i} sc1", "rs") for i in range(3)] + [rs_ld3]
    rs_t = [f"v_add_f32 v{SM+t}, v{PR+t}, v{PR+4+t}" for t in range(4)] + [f"v_add_f32 v{SM+4+t}, v{PR+8+t}, v{PR+12+t}" for t in range(4)] + \
           [f"v_add_f32 v{SM+t}, v{SM+t}, v{SM+4+t}" for t in range(4)] + rowsum4(SM) + [f"v_cmp_u_f32 vcc, v{SM}, v{SM}"]
    rs_c = [f"v_mov_b32 v{SM+2}, {f32hex(EPS)}", f"v_mul_f32 v{SM}, {f32hex(1.0/448)}, v{SM}", f"v_add_f32 v{SM+1}, v{SM}, v{SM+2}", f"v_rsq_f32 v{SM+1}, v{SM+1}",
            f"v_mul_f32 v{SM}, v{SM}, v{SM+1}", f"v_fma_f32 v{SM}, v{SM}, v{SM+1}, v{SM+2}", f"v_rsq_f32 v{SM}, v{SM}",
            f"v_mul_f32 v{RSV}, v{SM}, v{SM+1}", f"v_mul_f32 v{RSV+1}, v{SM}, v{SM+1}", f"v_permlane16_swap_b32 v{RSV}, v{RSV+1}",
            f"v_mov_b32 v{RSV+2}, v{RSV}", f"v_mov_b32 v{RSV+3}, v{RSV+1}", f"v_permlane32_swap_b32 v{RSV}, v{RSV+2}", f"v_permlane32_swap_b32 v{RSV+1}, v{RSV+3}"]
    for s in range(14):
        g = {}
        r = RAW + (s % R1) * 16
        M = mf16(ACC, AF + (s & 1)*16, r, s == 0)
        E = [f"{MF} {vr(EA+4*t,4,'a')}, {vr(EQ+4*(s&1),4,'a')}, {vr(r+4*t,4)}, {'0' if s == 0 else vr(EA+4*t,4,'a')}" for t in range(4)] if ext else []
        Sq = [f"{MF} {vr(240+4*(t&1),4)}, {vr(r+4*t,4)}, {vr(r+4*t,4)}, 0" for t in range(4)]
        mf = E + M
        oo = o
        if s == 0:
            mf = E + M[:2] + Sq[:2] + M[2:11] + Sq[2:] + M[11:]
            if ext: put(g, 1, msk)
            put(g, o + 8, sel(0) + sel(1), 2)
            oo = o + 4
        last = len(mf) - 1
        if s == 1: put(g, 0, sel(2) + sel(3), 2); put(g, 3, [rs_st])
        ld = g1_loads(s + R1 - 1) if s + R1 - 1 < 14 else []
        if pend:
            pend += ld; n = len(mf) // 2
            put(g, 0, pend[:n], 1, 2, last); pend = pend[n:]
        else: put(g, 0, ld, 1, 4, last)
        if s + 1 < 14:
            rd, ck, sw = parts(s + 1, s + R1)
            put(g, oo + 1 - (o > 0), rd, last=last); put(g, oo + 5, ck, last=last); put(g, oo + 9, sw, last=last)
        if s == 7: put(g, 1, [f"v_mov_b32 v{PR+12+t}, 0" for t in range(4)], 2)
        if s == 8: put(g, 0, rs_ld, 1, 4)
        if s == 12: put(g, 0, retry_parts(name + "rs", rs_t, lambda q: emit_all(q, rs_ld), ("rs",)), 2 if not ext else 1, last=last)
        if s == 13: put(g, 0, rs_c, last=last)
        for gap, items, per, st in extra.get(s, []): put(g, gap, items, per, st, last)
        gaps(b, mf, g)
        if s in (2, 6, 10): stamp(b, f"{name}_s{s}")
    stamp(b, name + "_main")

def g1_epilogue(b, name, hbuf, fills):
    SS = RSV
    B1, TT = 208, 224
    for i in range(8): b.I(f"v_accvgpr_read_b32 v{B1+2*i+1}, a{224+i}")
    for i in range(8):
        b.I(f"v_lshlrev_b32 v{B1+2*i}, 16, v{B1+2*i+1}")
        b.I(f"v_and_b32 v{B1+2*i+1}, 0xffff0000, v{B1+2*i+1}")
    b.I(f"s_mov_b32 s56, {f32hex(GELU_B)}"); b.I(f"s_mov_b32 s57, {f32hex(GELU_A)}")
    b.I(f"s_add_u32 s55, s61, {hbuf}")
    for h in range(2):
        ops = []
        for tp in range(2):
            items = [(m, t, hf) for t in (2*tp, 2*tp+1) for m in (2*h, 2*h+1) for hf in range(2)]
            acc = lambda it: vr(ACC + (it[0]*4+it[1])*4 + 2*it[2], 2)
            T = lambda i: vr(TT+2*i, 2)
            for i, it in enumerate(items):
                o = it[1] & 1
                ops.append(f"v_pk_fma_f32 {acc(it)}, {acc(it)}, {vr(SS+(it[1]&2),2)}, {vr(B1+4*it[0]+2*it[2],2)} op_sel:[0,{o},0] op_sel_hi:[1,{o},1]")
            for i, it in enumerate(items): ops.append(f"v_pk_mul_f32 {T(i)}, {acc(it)}, {acc(it)}")
            for i, it in enumerate(items): ops.append(f"v_pk_fma_f32 {T(i)}, {T(i)}, s[56:57], s[56:57] op_sel:[0,0,1] op_sel_hi:[1,0,1]")
            for i, it in enumerate(items): ops.append(f"v_pk_mul_f32 {T(i)}, {T(i)}, {acc(it)}")
            for i in range(16): ops.append(f"v_exp_f32 v{TT+i}, v{TT+i}")
            for i in range(8): ops.append(f"v_pk_add_f32 {T(i)}, {T(i)}, 1.0 op_sel_hi:[1,0]")
            for i in range(16): ops.append(f"v_rcp_f32 v{TT+i}, v{TT+i}")
            for i, it in enumerate(items): ops.append(f"v_pk_mul_f32 {T(i)}, {T(i)}, {acc(it)}")
            for i in range(8): ops.append(f"v_cvt_pk_bf16_f32 v{TT+i}, v{TT+2*i}, v{TT+2*i+1}")
            def hst(blk, nm=f"{name}h{h}{tp}", tp=tp):
                st = [f"buffer_store_dwordx4 {vr(TT+4*u,4)}, v2, {S4(WS)}, s55 offen offset:{1024*(2*tp+u)}" for u in range(2)]
                blk.I("s_cmp_lg_u32 s10, 0"); blk.I(f"s_cbranch_scc1 L_alt_{nm}")
                for x in st: blk.I(x)
                blk.label(f"L_ret_{nm}")
                v = Block(); v.label(f"L_alt_{nm}")
                for x in st: v.I(x + " sc1")
                v.I(f"s_branch L_ret_{nm}")
                slow_blocks.append(v)
            ops.append(hst)
        interleave(b, ops, fills[h])
        if h == 0: b.I("s_add_u32 s55, s55, 4096"); stamp(b, name + "_e0")
    stamp(b, name + "_epi")

def atom(*xs): return lambda blk: [blk.I(x) for x in xs]
def g2_offsets():
    o = [f"s_mul_i32 s60, s{SW}, {14*4096}", f"s_lshl_b32 s62, s{SQ}, 1", f"s_add_u32 s62, s62, s{SJ}", "s_sub_u32 s63, s62, 7", atom("s_cmp_ge_u32 s62, 7", "s_cselect_b32 s62, s63, s62")]
    for s in range(7):
        o += [f"s_lshl_b32 s{O2+s}, s62, 13", f"s_add_u32 s{O2+s}, s{O2+s}, s60", f"s_add_u32 s{O2+7+s}, s{O2+s}, 4096",
              "s_add_u32 s62, s62, 1", atom("s_cmp_eq_u32 s62, 7", "s_cselect_b32 s62, 0, s62")]
    return o
def w2_loads(layer, T):
    out = []
    for s in range(14):
        for m in range(4):
            if layer == 0: out.append(f"buffer_load_dwordx4 {vr((s*4+m)*4,4,'a')}, v{5+m}, {S4(T)}, s{O2+s} offen sc1")
            else: out.append(f"buffer_load_dwordx4 {vr((s*4+m)*4,4,'a')}, v2, {S4(T)}, s{O2+s} offen offset:{1024*m} sc1")
    return out
def h_loads(s, layer):
    r = HRS[s % R2]
    if layer == 0: return [(f"buffer_load_dwordx4 {vr(r+4*t,4)}, v2, {S4(T2)}, s{O2+s} offen offset:{1024*t} sc1", ("H", s)) for t in range(4)]
    return [(f"buffer_load_dwordx4 {vr(r+4*t,4)}, v{5+t}, {S4(T2)}, s{O2+s} offen sc1", ("H", s)) for t in range(4)]
def g2_main(b, name, layer, extra):
    wtags = [("H", s) for s in range(14)]
    def chk(s, hi):
        r = HRS[s % R2]
        def rel(q):
            for s2 in range(s, min(hi, 14)):
                for l in h_loads(s2, layer): emit(q, l)
        return retry_parts(f"{name}_{s}", [f"v_max3_u32 v9, v{r}, v{r+4}, v{r+8}", f"v_max_u32 v9, v9, v{r+12}", "v_cmp_eq_u32 vcc, -1, v9"], rel, wtags)
    for x in chk(0, H0): emit(b, x)
    stamp(b, name + "_first")
    pend = [l for s in range(H0, R2 - 1) for l in h_loads(s, layer)]
    for s in range(14):
        g = {}
        ld = h_loads(s + R2 - 1, layer) if s + R2 - 1 < 14 and s + R2 - 1 >= H0 else []
        if pend:
            pend += ld
            put(g, 0, pend[:8], 1, 2); pend = pend[8:]
        else: put(g, 0, ld, 1, 4)
        for gap, items, per, st in extra.get(s, []): put(g, gap, items, per, st)
        if s + 1 < 14: put(g, 11, chk(s + 1, s + R2))
        gaps(b, mf16(ACC, s*16, HRS[s % R2], s == 0, ka='a'), g)
        if s in (2, 6, 10): stamp(b, f"{name}_s{s}")
    stamp(b, name + "_main")

PF = "v[240:243]"
def ssq_setup(buf):
    return ["v_or_b32 v13, s3, v4", "v_cmp_eq_u32 s[56:57], 0, v13", "v_lshl_add_u32 v13, v4, 2, v250",
            f"s_lshl_b32 s55, s{SB}, 8", f"s_lshl_b32 s58, s{SJ}, 13", "s_add_u32 s55, s55, s58", f"s_add_u32 s55, s55, {buf}",
            "v_lshl_add_u32 v14, v1, 2, v2", f"v_add_u32 v14, {L_SQ}, v14"]
def store_xc(blk, buf, r):
    blk.I(f"s_add_u32 s53, s11, {buf}")
    for e in range(2):
        for t in range(4): blk.I(f"v_cvt_pk_bf16_f32 v{r+4*e+t}, v{ACC+4*t+2*e}, v{ACC+4*t+2*e+1}")
        blk.I(f"buffer_store_dwordx4 {vr(r+4*e,4)}, v2, {S4(WS)}, s53 offen offset:{1024*e} sc1", tag="xst")
def ssq_out(b, name, Q, pre=None):
    for t in range(4):
        a = ACC + 4*t
        b.I(f"v_cndmask_b32 v{a+1}, v{a+1}, 0, s[56:57]")
        b.I(f"v_mul_f32 v{Q+t}, v{a}, v{a}")
    for r in range(1, 4):
        for t in range(4): b.I(f"v_fmac_f32 v{Q+t}, v{ACC+4*t+r}, v{ACC+4*t+r}")
    emit_all(b, rowsum4(Q))
    b.I(f"ds_write_b32 v14, v{Q}")
    if pre: pre(b)
    b.barrier()
    def f(blk):
        blk.I(f"ds_read_b128 {vr(Q+4,4)}, v14")
        blk.I(f"v_pk_add_f32 {vr(Q+4,2)}, {vr(Q+4,2)}, {vr(Q+6,2)}"); blk.I(f"v_add_f32 v{Q+4}, v{Q+4}, v{Q+5}")
        blk.I(f"buffer_store_dword v{Q+4}, v13, {S4(WS)}, s55 offen sc1")
    wave0(b, name, f)

def kernel():
    b = Block()
    stamp(b, "start")
    b.I("s_load_dwordx16 s[4:19], s[0:1], 0")
    b.I("s_load_dwordx4 s[20:23], s[0:1], 64")
    b.I("s_load_dwordx2 s[24:25], s[0:1], 80")
    pend = list(b.lg)
    b.I("v_lshrrev_b32 v1, 6, v0")
    b.I("v_and_b32 v2, 63, v0")
    b.I(f"v_readfirstlane_b32 s{SW}, v1")
    b.I("v_and_b32 v3, 15, v0")
    b.I("v_lshrrev_b32 v4, 4, v2")
    b.I("v_lshlrev_b32 v2, 4, v2")
    b.I(f"s_mov_b32 s{SBUD}, 30000")
    tab_srd(b, T3, KNAME, None, "L_code_end-" + KNAME)
    b.I(f"s_lshr_b32 s{SI}, s2, 3"); b.I(f"s_and_b32 s{SX}, s2, 7")
    b.I(f"s_lshl_b32 s53, s{SI}, 2"); b.I(f"s_add_u32 s53, s53, s{SW}"); b.I("s_lshl_b32 s53, s53, 10")
    b.I(f"buffer_load_dwordx4 v[244:247], v2, {S4(T3)}, s53 offen")
    warm = list(b.vm)
    b.I("v_and_b32 v0, 31, v0"); b.I("v_lshlrev_b32 v0, 7, v0")
    for i in range(4): b.I(f"v_mov_b32 v{240+i}, -1")
    b.I("s_getreg_b32 s99, hwreg(HW_REG_XCC_ID, 0, 4)"); b.I("s_add_u32 s99, s99, 1")
    b.I("v_lshlrev_b32 v250, 4, v3")
    b.I("s_cmp_ge_u32 s2, 224")
    b.I("s_cbranch_scc1 L_helper")
    div7(b, SQ, SJ, SI)
    b.I(f"s_lshl_b32 s{SB}, s{SX}, 2"); b.I(f"s_add_u32 s{SB}, s{SB}, s{SQ}")
    for m in range(4):
        b.I(f"v_xor_b32 v{5+m}, {m}, v1"); b.I(f"v_lshl_add_u32 v{5+m}, v{5+m}, 10, v2")
    b.I(f"s_lshl_b32 s64, s{SW}, 12")
    for i in range(1, 3): b.I(f"s_add_u32 s{64+i}, s64, {i*16384}")
    b.I(f"s_lshr_b32 s67, s{SW}, 1"); b.I("s_lshl_b32 s67, s67, 12"); b.I("s_add_u32 s67, s67, 49152")
    H2_ = (0, 2)
    XB = 80
    s0_of_B(b, 68, SB, 53)
    b.I("s_mul_i32 s68, s68, 896")
    b.I("v_lshrrev_b32 v9, 6, v2"); b.I("v_mul_u32_u24 v251, 896, v9")
    b.I("v_xor_b32 v9, v3, v4"); b.I("v_and_b32 v9, 3, v9"); b.I("v_lshl_add_u32 v251, v9, 4, v251")
    b.I(f"s_bitcmp1_b32 s{SJ}, 0")
    for p in range(4): b.I(f"s_cselect_b32 s{80+p}, s{64+(p+3)%4}, s{64+p}")
    for p in range(4): b.I(f"s_lshr_b32 s{72+p}, s{80+p}, 6")
    b.I(f"s_lshl_b32 s3, s{SJ}, 2"); b.I(f"s_add_u32 s3, s3, s{SW}")
    b.I("s_lshl_b32 s53, s3, 11"); b.I(f"s_mul_i32 s70, s{SB}, {BS}"); b.I("s_add_u32 s70, s70, s53")
    b.I(f"s_lshl_b32 s71, s{SB}, 8"); b.I(f"s_lshl_b32 s53, s{SJ}, 13"); b.I("s_add_u32 s71, s71, s53"); b.I(f"s_add_u32 s71, s71, {SSQ0}")
    qgen(b)
    stamp(b, "qset")
    srd(b, WS, 24, None, WS_BYTES)
    srd(b, T2, 4, None, S*D*2)
    pf0 = [(f"buffer_store_dwordx4 {PF}, v2, {S4(WS)}, s70 offen offset:{XC0+1024*i} sc1", "pf0") for i in range(2)]
    def pfs(blk):
        blk.I("s_mov_b64 exec, 0xffff"); blk.I(f"buffer_store_dwordx4 {PF}, v2, {S4(WS)}, s71 offen sc1", tag="pf0"); blk.I("s_mov_b64 exec, -1")
    def xd(p, t):
        def g(blk):
            blk.I(f"s_add_u32 m0, s{80+p}, {L_X + t*1024}")
            blk.I(f"s_add_u32 s53, s{72+p}, {t*32*896}"); blk.I("s_add_u32 s53, s53, s68")
            blk.I(f"buffer_load_dwordx4 v251, {S4(T2)}, s53 offen lds", tag=("x", p))
        return g
    xl = [xd(p, t) for p in range(4) for t in range(4)]
    if PFP == 0: emit_all(b, pf0 + [pfs])
    emit_all(b, xl[:NX1])
    if PFP == 1: emit_all(b, pf0 + [pfs])
    stamp(b, "xiss")
    qgen_loop(b)
    stamp(b, "qgen")
    emit_all(b, xl[NX1:])
    b.I("s_mov_b32 s11, s70")
    b.I(f"s_add_u32 s70, s70, {XC1}")
    for i in range(2): b.I(f"buffer_store_dwordx4 {PF}, v2, {S4(WS)}, s70 offen offset:{1024*i} sc1", tag="pf1")
    srd(b, DBG, 22, None, 256)
    b.I(f"v_mov_b32 v{FR}, 1"); b.I("v_lshlrev_b32 v147, 2, v2")
    wave0(b, "dq", dbg_issue)
    for m in range(4): b.I(f"v_add_u32 v{10+m}, s64, v{5+m}")
    for m in H2_: b.I(f"v_add_u32 v{14+m//2}, s67, v{5+m}")
    for i in range(4):
        for m in (range(4) if i < 3 else H2_): b.I(f"ds_read_b128 {vr((i*4+m)*4,4,'a')}, v{10+m if i < 3 else 14+m//2} offset:{L_W1 + (i*16384 if i < 3 else 0)}")
    b.I("v_lshrrev_b32 v9, 2, v3"); b.I("v_xor_b32 v9, v9, v4"); b.I("v_lshlrev_b32 v9, 4, v9"); b.I("v_lshl_add_u32 v253, v3, 6, v9")
    b.I("v_add_u32 v254, s67, v253"); b.I("v_add_u32 v253, s64, v253")
    b.I(f"v_add_u32 v144, {L_X}, v253"); b.I(f"v_add_u32 v145, {L_X}, v254")
    b.I("v_lshrrev_b32 v148, 7, v2"); b.I("v_mul_u32_u24 v148, 3584, v148")
    b.I("v_and_b32 v9, 0x70, v2"); b.I("v_add_u32 v148, v148, v9")
    b.I(f"s_lshl_b32 s69, s{SB}, 7")
    srd(b, T3, 12, None, WSZ)
    b.I(f"s_cmp_lt_u32 s{SB}, 28"); b.I(f"s_cselect_b32 s{T3+2}, s{T3+2}, 0")
    b.I(f"s_lshl_b32 s98, s{SB}, 3"); b.I(f"s_add_u32 s98, s98, s{SJ}"); b.I("s_lshl_b32 s96, s98, 7"); b.I("s_lshl_b32 s98, s98, 5"); b.I(f"s_add_u32 s98, s98, {ARR}")
    def rdx(i):
        b.wait_vm_tag(("x", min(i + 1, 3)))
        for t in range(4): b.I(f"ds_read_b128 {vr(XB+16*i+4*t,4)}, v{144 + (i == 3)} offset:{(i*16384 if i < 3 else 0) + t*1024}")
    b.wait_vm_tag("pf0")
    rdx(0)
    b.barrier()
    stamp(b, "x0")
    po = [f"s_mul_i32 s54, s{SW}, {8*BS}", "s_lshl_b32 s58, s2, 8", "s_add_u32 s54, s54, s58",
          f"s_lshl_b32 s58, s{SX}, 2", f"s_add_u32 s58, s58, s{SW}", "s_mul_i32 s58, s58, 56",
          f"s_lshl_b32 s61, s{SI}, 1", "s_add_u32 s61, s61, s58", "s_lshl_b32 s61, s61, 12",
          f"v_mul_u32_u24 v248, {BS}, v4", "v_add_u32 v248, v250, v248", f"v_add_u32 v249, {4*BS}, v248",
          f"s_add_u32 s96, s96, {FL(0)}",
          f"s_lshl_b32 s97, s{SJ}, 5", f"s_add_u32 s97, s97, s{SB}", "s_lshl_b32 s97, s97, 7", f"s_add_u32 s97, s97, {FL(1)}"]
    pfh = []
    for h in range(2):
        pfh += [(lambda blk, i=i, h=h: (blk.I(f"s_add_u32 s53, s61, {H1 + 4096*h}"), blk.I(f"buffer_store_dwordx4 v[184:187], v2, {S4(WS)}, s53 offen offset:{1024*i} sc1", tag="pfh"))) for i in range(4)]
    def dmaB(p):
        def f(u):
            def g(blk):
                if u == 0: blk.I(f"s_mul_i32 s55, s{80+p}, 28"); blk.I("s_add_u32 s55, s55, s69")
                blk.I(f"s_add_u32 m0, s{80+p}, {L_W1 + u*1024}")
                blk.I(f"s_add_u32 s53, s55, {8*u*3584}")
                blk.I(f"buffer_load_dwordx4 v148, {S4(T3)}, s53 offen lds", tag=("B", p))
            return g
        return [f(u) for u in range(4)]
    ct = coltab(150)
    def mix(vm, va):
        out = []; k = 0
        for i, x in enumerate(va):
            while k < len(vm) and k * len(va) <= i * len(vm): out.append(vm[k]); k += 1
            out.append(x)
        return out + vm[k:]
    rdx(1)
    interleave(b, mf16(ACC, 0, XB, True, ka='a'), mix(dmaB(0), po))
    rdx(2); rdx(3)
    interleave(b, mf16(ACC, 16, XB+16, False, ka='a'), mix(dmaB(1), ct[:16]))
    arrive(b, "arr", 8)
    stamp(b, "arr")
    interleave(b, mf16(ACC, 32, XB+32, False, ka='a'), mix(dmaB(2), ct[16:32]))
    interleave(b, mf16(ACC, 48, XB+48, False, ka='a', ms=H2_), mix(dmaB(3)[:2], ct[32:45]))
    stamp(b, "A_mfma")
    def midA(blk):
        emit_all(blk, dmaB(3)[2:])
        emit_all(blk, ssq_setup(SSQ0))
    reduce4(b, L_R0, 32, 9, mid=midA)
    store_xc(b, XC0, 128)
    stamp(b, "A_st")
    ssq_out(b, "sq0", 136, pre=lambda blk: blk.wait_vm_tag("pf1"))
    stamp(b, "A_sq")
    aiss = [f"s_lshl_b32 s71, s{SW}, 11", f"s_add_u32 s71, s71, {ARR}", "v_lshlrev_b32 v147, 1, v2", (f"buffer_load_dword v146, v147, {S4(WS)}, s71 offen sc1", "poll")]
    emit_all(b, aiss)
    b.I("v_lshrrev_b32 v144, 2, v3"); b.I("v_lshl_add_u32 v144, v4, 3, v144"); b.I("v_lshlrev_b32 v144, 7, v144")
    b.I("v_and_b32 v145, 3, v3"); b.I("v_lshl_add_u32 v144, v145, 3, v144"); b.I("v_add_u32 v145, s67, v144"); b.I("v_add_u32 v144, s64, v144")
    srd(b, T1, 14, None, F*2)
    b.I(f"s_lshl_b32 s70, s{SI}, 7"); b.I("v_lshlrev_b32 v148, 3, v4")
    def rdB(i):
        b.wait_vm_tag(("B", min(i + 1, 3)))
        for nt in range(4):
            for hh in range(2):
                b.I(f"ds_read_b64_tr_b16 {vr(XB+16*i+4*nt+2*hh,2)}, v{144 + (i == 3)} offset:{L_W1+(i*16384 if i < 3 else 0)+hh*512+nt*32}")
    rdB(0); rdB(1)
    stamp(b, "B_in")
    interleave(b, mf16(ACC, 0, XB, True, ka='a'), mix([f"buffer_load_dwordx2 {vr(224+2*m,2,'a')}, v148, {S4(T1)}, s70 offen offset:{32*m}" for m in range(4)], ct[45:70]))
    rdB(2); rdB(3)
    interleave(b, mf16(ACC, 16, XB+16, False, ka='a'), mix(col_setup(XC0, SSQ0) + col_wt()[:4] + [f"v_mov_b32 v{184+i}, -1" for i in range(4)] + ["v_lshrrev_b32 v189, 2, v0"], ct[70:92]))
    cl = col_loads(XC0, SSQ0, 7)
    achk = retry_parts("ar", ["v_cmp_eq_u32 vcc, 0, v146"], lambda q: (q.I("s_sleep 2"), emit(q, aiss[-1])))
    interleave(b, mf16(ACC, 32, XB+32, False, ka='a'), ct[92:])
    emit_all(b, achk)
    stamp(b, "achk")
    interleave(b, mf16(ACC, 48, XB+48, False, ka='a', ms=H2_), cl[:2])
    b.I(f"s_mul_i32 s55, s{SB}, 14"); b.I("s_lshr_b32 s53, s3, 1"); b.I("s_add_u32 s55, s55, s53"); b.I("s_lshl_b32 s55, s55, 12")
    b.I("s_and_b32 s53, s3, 1"); b.I("s_lshl_b32 s53, s53, 3"); b.I("s_add_u32 s55, s55, s53")
    srd(b, T3, 24, W1P, WSZ)
    reduce4(b, L_R1, 32, 9, mid=lambda blk: emit_all(blk, cl[2:] + col_wt()[4:]))
    for nt in range(4):
        b.I(f"v_cndmask_b32 v{ACC+4*nt+1}, v{ACC+4*nt+1}, 0, s[56:57]")
        b.I(f"v_cvt_pk_bf16_f32 v{80+2*nt}, v{ACC+4*nt}, v{ACC+4*nt+1}")
        b.I(f"v_cvt_pk_bf16_f32 v{81+2*nt}, v{ACC+4*nt+2}, v{ACC+4*nt+3}")
        b.I(f"buffer_store_dwordx2 {vr(80+2*nt,2)}, v2, {S4(T3)}, s55 offen offset:{1024*nt} sc1", tag="w1p")
    stamp(b, "B_st")
    b.I(f"s_sub_u32 s70, s{SB}, 4"); b.I(f"s_mul_i32 s70, s70, {64*896}")
    b.I(f"s_cmp_lt_u32 s{SB}, 4")
    b.I("s_cselect_b32 s70, 0, s70")
    b.I(f"s_cselect_b32 s{T2}, s18, s16"); b.I(f"s_cselect_b32 s{T2+1}, s19, s17")
    b.I(f"s_mov_b32 s{T2+2}, {WSZ}"); b.I(f"s_cselect_b32 s{T2+2}, 896, s{T2+2}")
    b.I(f"s_lshl_b32 s71, s{SI}, 10"); b.I(f"s_add_u32 s71, s71, {FL(0)}")
    def dmaC(i, u):
        def g(blk):
            if u == 0: blk.I(f"s_add_u32 s55, s70, s{72+i}")
            blk.I(f"s_add_u32 m0, s{80+i}, {L_R1 + u*1024}")
            blk.I(f"s_add_u32 s53, s55, {16*896*u}")
            blk.I(f"buffer_load_dwordx4 v251, {S4(T2)}, s53 offen lds", tag="w2d")
        return g
    dc = [dmaC(i, u) for i in range(4) for u in range(4)]
    col(b, "c1", XC0, XC1, SSQ0, 7, L_R0, wchk=True,
        pre_b1=lambda blk: blk.wait_vm_tag("w1p"), post_b1=lambda blk: flag_set(blk, "fs0", "s96"),
        post_b2=lambda blk: (emit(blk, flag_issue("s71", 7)), blk.wait_vm_tag("pfh")),
        vfill=mix(pfh, dc[:8]) + dc[8:] + [f"s_lshl_b32 s53, s{SX}, 10", f"s_add_u32 s53, s53, {ARR}", f"buffer_load_dword v188, v189, {S4(WS)}, s53 offen sc1"])
    b.I("s_getreg_b32 s53, hwreg(HW_REG_XCC_ID, 0, 4)"); b.I("s_add_u32 s53, s53, 1")
    b.I("v_cmp_ne_u32 vcc, s53, v188"); b.nop(2); b.I("s_and_b32 s53, vcc_lo, 0x7f7f7f7f"); b.I(f"s_cselect_b32 s10, 1, {FORCE_SC}")
    srd(b, XS, 24, XC1, XSZ)
    b.I(f"v_subrev_u32 v9, {L_R1}, v2"); b.I("v_sub_u32 v253, v253, v9"); b.I("v_sub_u32 v254, v254, v9")
    for m in range(4): b.I(f"v_add_u32 v{144+m}, v253, v{5+m}"); b.I(f"v_add_u32 v{148+m}, v254, v{5+m}")
    b.wait_vm_tag("w2d")
    for i in range(4):
        for m in range(4): b.I(f"ds_read_b128 {vr(XB+16*i+4*m,4)}, v{144 + 4*(i == 3) + m} offset:{i*16384 if i < 3 else 0}")
    flag_check(b, "f0", "s71", 7)
    stamp(b, "f0")
    emit_all(b, g1_offsets())
    b.I(f"s_mul_i32 s58, s{SI}, {BS}"); b.I(f"s_lshl_b32 s59, s{SW}, 10"); b.I("s_add_u32 s58, s58, s59"); b.I("s_sub_u32 s58, s58, s94")
    def w1d(s):
        def g(blk):
            blk.I(f"s_add_u32 m0, s59, {L_W1 + s*4096}")
            blk.I(f"s_add_u32 s53, s58, s{O1+s}")
            blk.I(f"buffer_load_dwordx4 v2, {S4(T3)}, s53 offen sc1 lds", tag="w1d")
        return g
    wd = [w1d(s) for s in range(14)]
    mc = mf16(ACC, XB, 0, True, kb='a') + mf16(ACC, XB+16, 16, False, kb='a') + mf16(ACC, XB+32, 32, False, kb='a') + mf16(ACC, XB+48, 48, False, kb='a', ts=H2_)
    interleave(b, mc, mix(wd, g2_offsets()))
    stamp(b, "C_mfma")
    b.barrier()
    b.I(f"s_sub_u32 s56, s{SB}, 4"); b.I("s_lshl_b32 s56, s56, 1"); b.I(f"s_lshr_b32 s53, s{SW}, 1"); b.I("s_add_u32 s56, s56, s53")
    b.I(f"s_mul_i32 s53, s{SJ}, 56"); b.I("s_add_u32 s56, s56, s53"); b.I("s_lshl_b32 s56, s56, 12")
    b.I(f"s_and_b32 s53, s{SW}, 1"); b.I("s_lshl_b32 s53, s53, 3"); b.I("s_add_u32 s56, s56, s53")
    srd(b, T2, 24, W2P, WSZ)
    b.I(f"s_cmp_lt_u32 s{SB}, 4"); b.I(f"s_cselect_b32 s{T2+2}, 0, s{T2+2}"); b.I("s_cselect_b32 s56, 0, s56")
    srd(b, T1, 24, B2P, 1792)
    b.I(f"s_or_b32 s53, s{SB}, s{SW}"); b.I("s_cmp_eq_u32 s53, 0"); b.I(f"s_cselect_b32 s{T1+2}, s{T1+2}, 0")
    b.I(f"s_lshl_b32 s57, s{SJ}, 8")
    b.I("v_lshlrev_b32 v13, 2, v3"); b.I("v_lshl_add_u32 v13, v4, 12, v13")
    def midC(blk):
        for s in range(W0): emit_all(blk, g1_loads(s))
    reduce4(b, L_R0, 32, 9, mode='c', mid=midC)
    for t in range(4):
        b.I(f"buffer_store_dword v{ACC+4*t}, v13, {S4(T1)}, s57 offen offset:{64*t} sc1")
        b.I(f"v_cvt_pk_bf16_f32 v{240+2*t}, v{ACC+4*t}, v{ACC+4*t+1}")
        b.I(f"v_cvt_pk_bf16_f32 v{241+2*t}, v{ACC+4*t+2}, v{ACC+4*t+3}")
        b.I(f"buffer_store_dwordx2 {vr(240+2*t,2)}, v{5+t}, {S4(T2)}, s56 offen sc1", tag="w2p")
    stamp(b, "C_st")
    emit_all(b, g1_pre(RSP1))
    b.wait_vm_tag("w1d")
    b.barrier()
    stamp(b, "w1_rdy")
    def g2_srd(t, mul, buf):
        return [f"s_mul_i32 s53, s{mul}, {56*4096}", f"s_add_u32 s53, s53, {buf}", lambda blk: srd(blk, t, 24, "s53", 56*4096)]
    def cdone(blk):
        blk.wait_vm_tag("w2p"); blk.barrier(lg=False); flag_set(blk, "fs1", "s97")
    w2 = w2_loads(0, T1)
    ex = {2: [(15, [cdone], 1, 1)],
          6: [(1, g2_srd(T1, SJ, W2P) + g2_srd(T2, SB, H1) + [f"s_lshl_b32 s78, s{SJ}, 12", f"s_add_u32 s78, s78, {FL(1)}"], 3, 1)],
          7: [(0, [flag_issue("s78")], 1, 1)],
          9: [(14, flag_parts("f1", "s78"), 2, 1)]}
    for s in range(10, 14): ex[s] = [(0, w2[5*(s-10):5*(s-9)], 1, 3)]
    g1(b, "g1a", False, ex)
    hl = [l for s in range(H0) for l in h_loads(s, 0)]
    g1_epilogue(b, "g1a", H1, [w2[20:36], w2[36:40] + hl[:12]])
    emit_all(b, hl[12:])
    RS_ = 112
    res_loads = [f"s_add_u32 s58, s11, {XC1}"] + [f"buffer_load_dwordx4 {vr(RS_+4*e,4)}, v2, {S4(WS)}, s58 offen offset:{1024*e} sc1" for e in range(2)] + \
                [lambda blk: emit_all(blk, ["s_lshl_b32 s53, s3, 6", f"s_add_u32 s53, s53, {B2P}", "v_lshlrev_b32 v15, 4, v4", f"buffer_load_dwordx4 {vr(RS_+8,4)}, v15, {S4(WS)}, s53 offen sc1"])]
    w2t = w2_loads(1, T3)
    ex = {8: [(2, [f"s_mov_b32 s79, {FL(2)}", flag_issue("s79")] + g2_srd(T3, SJ, W2T), 2, 1)],
          9: [(0, w2[48:52], 1, 4)], 10: [(0, w2[52:56], 1, 4)],
          11: [(0, res_loads, 1, 4), (9, flag_parts("f4", "s79"), 2, 1)],
          12: [(0, w2t[0:4], 1, 4)], 13: [(0, w2t[4:8], 1, 4), (2, col_setup(XC2, SSQ2), 3, 1)]}
    for s in range(8): ex.setdefault(s, []).append((6, w2[40 + s:41 + s], 1, 1))
    g2_main(b, "g2a", 0, ex)
    def midG(blk):
        for t in range(4):
            for e in range(2):
                blk.I(f"v_lshlrev_b32 v{80+4*t+2*e}, 16, v{RS_+4*e+t}"); blk.I(f"v_and_b32 v{81+4*t+2*e}, 0xffff0000, v{RS_+4*e+t}")
            for h in range(2): blk.I(f"v_pk_add_f32 {vr(80+4*t+2*h,2)}, {vr(80+4*t+2*h,2)}, {vr(RS_+8+2*h,2)}")
        for t in range(4):
            for h in range(2): blk.I(f"v_pk_add_f32 {vr(ACC+4*t+2*h,2)}, {vr(ACC+4*t+2*h,2)}, {vr(80+4*t+2*h,2)}")
        emit_all(blk, ssq_setup(SSQ2))
        emit_all(blk, w2t[8:12])
    reduce4(b, L_R0, 32, 9, mid=midG)
    store_xc(b, XC2, 144)
    ssq_out(b, "sq2", 80)
    stamp(b, "g2a_epi")
    ct = coltab(32)
    interleave(b, ct[:70], col_wt() + w2t[12:18])
    b.wait_vm_tag("xst")
    stamp(b, "g2a_ack")
    interleave(b, ct[70:], col_loads(XC2, SSQ2, 7))
    col(b, "c2", XC2, XC3, SSQ2, 7, L_R1 + 16384, vfill=w2t[18:40])
    srd(b, XS, 24, XC3, XSZ)
    qt = qtgen(16)
    interleave(b, qt, w2t[40:46])
    emit_all(b, g1_pre(RSP3))
    b.wait_vm_tag("cst")
    stamp(b, "c2_ack")
    for s in range(W0): emit_all(b, g1_loads(s))
    b.barrier()
    ex = {8: [(18, [f"s_mov_b32 s79, {FL(3)}", flag_issue("s79")] + g2_srd(T2, SB, H2), 9, 1)],
          9: [(0, w2t[46:51], 1, 4)], 10: [(0, w2t[51:56], 1, 4)],
          11: [(2, flag_parts("f5", "s79"), 2, 1),
               (3, [f"s_lshl_b32 s58, s{SX}, 2", f"s_add_u32 s58, s58, s{SW}", "s_mul_i32 s58, s58, 7", f"s_lshr_b32 s53, s{SI}, 2", "s_add_u32 s58, s58, s53", "s_lshl_b32 s58, s58, 14",
                    f"s_and_b32 s53, s{SI}, 3", "s_lshl_b32 s53, s53, 10", "s_add_u32 s58, s58, s53", f"s_add_u32 s58, s58, {RES}"], 3, 1)]}
    def rst(t): return lambda blk: (blk.I(f"s_add_u32 s53, s58, {4096*t}"), blk.I(f"buffer_store_dwordx4 {vr(EA+4*t,4,'a')}, v2, {S4(WS)}, s53 offen sc1"))
    ex[13] = [(8, [rst(t) for t in range(4)], 1, 3)]
    g1(b, "g1b", True, ex)
    hl = [l for s in range(H0) for l in h_loads(s, 1)]
    g1_epilogue(b, "g1b", H2, [[], hl[:12]])
    emit_all(b, hl[12:])
    RF = 208
    fin_loads = [lambda blk: (srd(blk, T3, 18, None, 896), blk.I(f"s_lshl_b32 s53, s{SJ}, 7"), blk.I("v_lshlrev_b32 v15, 5, v4"),
                              [blk.I(f"buffer_load_dwordx4 {vr(RS_+4*e,4)}, v15, {S4(T3)}, s53 offen offset:{16*e}") for e in range(2)])]
    rl = [(f"buffer_load_dwordx4 {vr(RF+4*m,4)}, v2, {S4(WS)}, s58 offen offset:{1024*m} sc1", "rf") for m in range(4)]
    rsetup = [f"s_mul_i32 s58, s{SB}, 7", f"s_add_u32 s58, s58, s{SJ}", "s_lshl_b32 s58, s58, 2", f"s_add_u32 s58, s58, s{SW}", "s_lshl_b32 s58, s58, 12", f"s_add_u32 s58, s58, {RES}"]
    rck = retry_parts("rf", [f"v_max3_u32 v10, v{RF}, v{RF+4}, v{RF+8}", f"v_max_u32 v10, v10, v{RF+12}", "v_cmp_eq_u32 vcc, -1, v10"], lambda q: emit_all(q, rl), ("rf",))
    fb = []
    for i in range(8): fb += [f"v_lshlrev_b32 v{224+2*i}, 16, v{RS_+i}", f"v_and_b32 v{225+2*i}, 0xffff0000, v{RS_+i}"]
    fa = [f"v_add_f32 v{RF+i}, v{RF+i}, v{224+i}" for i in range(16)]
    g2_main(b, "g2b", 1, {8: [(2, rsetup, 3, 1)], 9: [(0, rl, 1, 4)], 10: [(0, fin_loads, 1, 1)], 12: [(0, fb, 2, 1)], 13: [(0, rck, 1, 1), (4, fa, 2, 1)]})
    def midF(blk):
        for m in range(4):
            for h in range(2): blk.I(f"v_pk_add_f32 {vr(ACC+16*m+2*h,2)}, {vr(ACC+16*m+2*h,2)}, {vr(RF+4*m+2*h,2)}")
        s0_of_B(blk, 55, SB, 58)
        blk.I(f"s_lshl_b32 s58, s{SW}, 5"); blk.I("s_add_u32 s55, s55, s58"); blk.I("s_mul_i32 s55, s55, 896")
        blk.I(f"s_lshl_b32 s58, s{SJ}, 7"); blk.I("s_add_u32 s55, s55, s58")
        srd(blk, T3, 20, None, S*D*2)
        blk.I("v_mul_u32_u24 v13, 896, v3"); blk.I("v_lshl_add_u32 v13, v4, 5, v13")
    reduce4(b, L_R0, 96, 9, mode='t', mid=midF)
    for m in range(4):
        for h in range(2): b.I(f"v_cvt_pk_bf16_f32 v{144+2*m+h}, v{ACC+16*m+2*h}, v{ACC+16*m+2*h+1}")
    for e in range(2): b.I(f"buffer_store_dwordx4 {vr(144+4*e,4)}, v13, {S4(T3)}, s55 offen offset:{16*e}")
    stamp_flush(b)
    b.I("s_endpgm")
    main = b
    names = list(stamp_names)
    b = Block(); b.label("L_helper"); b.lg = list(pend); b.vm = list(warm)
    stamp_n[0] = 1
    b.I("s_cmp_ge_u32 s2, 256")
    b.I("s_cbranch_scc1 L_end")
    b.I(f"s_sub_u32 s{SB}, s2, 224")
    for i in range(4): b.I(f"v_mov_b32 v{16+i}, 0")
    b.I(f"s_lshl_b32 s96, s{SB}, 7"); b.I(f"s_add_u32 s96, s96, {FL(2)}")
    b.I(f"s_lshl_b32 s98, s{SB}, 8"); b.I(f"s_add_u32 s98, s98, {ARR + 7*32}")
    b.I(f"s_lshr_b32 s56, s{SB}, 3"); b.I("s_lshl_b32 s56, s56, 4")
    b.I(f"s_and_b32 s53, s{SB}, 7"); b.I("s_lshl_b32 s53, s53, 8"); b.I("s_add_u32 s56, s56, s53")
    b.I(f"s_lshl_b32 s53, s{SW}, 6"); b.I("s_add_u32 s56, s56, s53"); b.I("s_mul_i32 s56, s56, 450")
    b.I("s_add_u32 s57, s56, 4096"); b.I(f"s_lshl_b32 s58, s{SW}, 14")
    b.I(f"s_lshl_b32 s59, s{SB}, 2"); b.I(f"s_add_u32 s59, s59, s{SW}")
    b.I("s_lshl_b32 s62, s59, 11"); b.I("s_lshl_b32 s63, s59, 6")
    b.I("s_lshl_b32 s60, s59, 10"); b.I(f"s_add_u32 s60, s60, {FLG}")
    b.I("s_mul_i32 s59, s59, 3072"); b.I(f"s_add_u32 s59, s59, {SSQ2}")
    b.I("v_lshlrev_b32 v13, 16, v4"); b.I("v_lshl_add_u32 v13, v1, 18, v13"); b.I("v_add_u32 v13, v250, v13")
    b.I(f"s_lshl_b32 s55, s{SB}, 8")
    b.I(f"v_mov_b32 v{FR}, 1"); b.I("v_lshlrev_b32 v147, 2, v2"); b.I("v_add_u32 v15, s62, v2"); b.I("v_mov_b32 v14, s63")
    srd(b, T1, 24, ARR, 8192)
    for i in range(2): b.I(f"buffer_store_dwordx4 v[16:19], v15, {S4(T1)}, 0 offen offset:{1024*i} sc1", tag="clr")
    srd(b, T2, 6, None, S*225*2); srd(b, T3, 8, None, S*225*2)
    srd(b, DBG, 22, None, 256)
    srd(b, WS, 24, None, WS_BYTES)
    for a, sr_ in enumerate((T2, T3)):
        for hf in range(2):
            b.I(f"s_add_u32 m0, s58, {a*8192 + hf*4096}")
            for u in range(4):
                if hf == 1 and u == 3: b.I("s_mov_b64 exec, 15")
                b.I(f"buffer_load_dwordx4 v2, {S4(sr_)}, s{56+hf} offen offset:{1024*u} lds", tag="wd")
        b.I("s_mov_b64 exec, -1")
        if a == 0:
            b.wait_vm_tag("clr")
            b.I("s_mov_b64 exec, 1")
            b.I(f"buffer_store_dword v{FR}, v14, {S4(DBG)}, 0 offen sc1")
            b.I("s_mov_b64 exec, -1")
            stamp(b, "h_clr")
    srd(b, T1, 24, WT, XSZ)
    for rd in range(2):
        for e in range(8):
            b.I(f"s_add_u32 s53, s55, {rd*(1<<20) + e*8192}")
            b.I(f"buffer_store_dwordx4 {PF}, v13, {S4(T1)}, s53 offen sc1", tag="pf0")
    for i in range(3): b.I(f"buffer_store_dwordx4 {PF}, v2, {S4(WS)}, s59 offen offset:{1024*i} sc1", tag="pf0")
    b.I("s_mov_b64 exec, 0xff")
    b.I(f"buffer_store_dword v16, v0, {S4(WS)}, s60 offen sc1", tag="pf0")
    b.I("s_mov_b64 exec, -1")
    wave0(b, "hdq", dbg_issue)
    stamp(b, "h_iss")
    def fill(blk, nm, base, nkb, u=4):
        blk.I(f"s_lshl_b32 s53, s{SB}, 2"); blk.I(f"s_add_u32 s53, s53, s{SW}"); blk.I(f"s_mul_i32 s53, s53, {nkb*1024}"); blk.I(f"s_add_u32 s53, s53, {base}")
        blk.I(f"s_mov_b32 s55, {nkb // u}")
        blk.label(f"L_{nm}")
        for i in range(u): blk.I(f"buffer_store_dwordx4 {PF}, v2, {S4(WS)}, s53 offen offset:{1024*i} sc1", tag=nm)
        blk.I(f"s_add_u32 s53, s53, {1024*u}"); blk.I("s_sub_u32 s55, s55, 1"); blk.I("s_cmp_lg_u32 s55, 0"); blk.I(f"s_cbranch_scc1 L_{nm}")
    b.I("v_mul_u32_u24 v10, 450, v3"); b.I("v_add_u32 v12, 448, v10"); b.I("v_and_b32 v10, -4, v10")
    b.I("v_lshl_add_u32 v10, v4, 4, v10"); b.I("v_lshl_add_u32 v88, v1, 6, v10")
    for i in range(1, 8): b.I(f"v_add_u32 v{88+i}, {8192*i}, v88")
    b.I("v_and_b32 v10, 1, v3"); b.I("v_lshlrev_b32 v10, 4, v10")
    b.I("v_or_b32 v14, v1, v4"); b.I("v_cmp_eq_u32 vcc, 0, v14"); b.I("v_mov_b32 v15, 0xffff"); b.I("v_cndmask_b32 v14, 0, v15, vcc")
    b.I("s_mov_b32 s56, 0x05040100"); b.I("s_mov_b32 s57, 0x07060302")
    b.I("v_mov_b32 v80, v147")
    b.wait_vm_tag("wd")
    b.barrier()
    stamp(b, "h_w")
    WB = 96
    for rd in range(2):
        for i in range(8):
            r = WB + (rd*8 + i) * 6
            b.I(f"ds_read2_b32 {vr(r,2)}, v{88+i} offset0:{64*rd} offset1:{64*rd+1}")
            b.I(f"ds_read2_b32 {vr(r+2,2)}, v{88+i} offset0:{64*rd+2} offset1:{64*rd+3}")
            b.I(f"ds_read_b32 v{r+4}, v{88+i} offset:{256*rd+16}")
        if rd == 0:
            for i in range(8): b.I(f"ds_read_u16 v{WB+6*i+5}, v12 offset:{8192*i}")
    for rd in range(2):
        for j in range(4):
            for i in range(8):
                r = WB + (rd*8 + i) * 6 + j
                b.I(f"v_alignbit_b32 v{r}, v{r+1}, v{r}, v10")
                if rd == 0 and j == 0: b.I(f"v_bfi_b32 v{r}, v14, v{r+5}, v{r}")
            for e in (2*j, 2*j+1):
                o = 16 + e * 4 + rd * 32
                for r in range(4):
                    re_ = WB + (rd*8 + 2*r) * 6 + j; im_ = re_ + 6
                    b.I(f"v_perm_b32 v{o+r}, v{im_}, v{re_}, s{56 + (e & 1)}")
    b.I("v_mov_b32 v147, v80")
    b.wait_vm(0)
    b.barrier()
    arrive(b, "harr", 0)
    stamp(b, "h_arr")
    for rd in range(2):
        for e in range(8):
            b.I(f"s_add_u32 s53, s55, {rd*(1<<20) + e*8192}")
            b.I(f"buffer_store_dwordx4 {vr(16+e*4+rd*32,4)}, v13, {S4(T1)}, s53 offen sc1")
    stamp(b, "h_wt")
    def hflag(blk, t, nm):
        blk.wait_vm(0)
        blk.barrier()
        blk.I(f"s_add_u32 s53, s96, {(t-2)*32768}")
        flag_set(blk, nm, "s53")
        stamp(blk, nm)
    b.barrier()
    srd(b, T2, 16, None, WSZ)
    srd(b, T3, 24, W2T, WSZ)
    b.I(f"s_mul_i32 s56, s{SW}, 7168")
    for rd in range(2):
        b.I(f"s_add_u32 s55, s{SB}, {32*rd}"); b.I("s_mul_i32 s55, s55, 28672"); b.I("s_add_u32 s55, s55, s56")
        for u in range(7):
            b.I(f"s_add_u32 m0, s56, {rd*28672 + u*1024}")
            b.I(f"s_add_u32 s53, s55, {u*1024}")
            b.I(f"buffer_load_dwordx4 v2, {S4(T2)}, s53 offen lds")
    fill(b, "pfx2", XC2, 28)
    b.I("v_lshrrev_b32 v10, 2, v3"); b.I("v_lshl_add_u32 v10, v4, 2, v10"); b.I("v_mul_u32_u24 v10, 896, v10")
    b.I("v_and_b32 v11, 3, v3"); b.I("v_lshl_add_u32 v10, v11, 5, v10")
    b.I("v_lshl_add_u32 v10, v1, 3, v10")
    b.I(f"s_lshl_b32 s57, s{SW}, 10")
    b.I("s_waitcnt vmcnt(28)")
    b.barrier()
    for rd in range(2):
        b.I(f"s_add_u32 s55, s{SB}, {32*rd}"); b.I("s_cmp_lt_u32 s55, 56"); b.I(f"s_cselect_b32 s{T3+2}, s{T3+2}, 0")
        b.I("s_lshl_b32 s55, s55, 12"); b.I("s_add_u32 s55, s55, s57")
        for J in range(7):
            for hh in range(2):
                b.I(f"ds_read_b64_tr_b16 {vr(16+rd*28+4*J+2*hh,2)}, v10 offset:{rd*28672+hh*14336+J*128}")
        for J in range(7):
            b.I(f"s_add_u32 s53, s55, {J*56*4096}")
            b.I(f"buffer_store_dwordx4 {vr(16+rd*28+4*J,4)}, v2, {S4(T3)}, s53 offen sc1")
    hflag(b, 2, "hf4")
    fill(b, "pfh2", H2, 84)
    hflag(b, 3, "hf5")
    stamp_flush(b)
    b.label("L_end")
    b.I("s_endpgm")
    global NAMES
    NAMES = " ".join(names) + "\n" + "start " + " ".join(stamp_names[len(names):]) + "\n"
    body = main.text() + b.text() + "".join(s.text() for s in slow_blocks) + "L_code_end:\n"
    return kernel_text(KNAME, body, 256, 256, 102)

def main():
    hdr = open("interleave_layers__spectral_gfnet__mixer_channel_mlp__prompt.s.ref").read().split("; Override")[0]
    out = hdr + f"; @launch grid=(256,1,1) block=(256,1,1) lds={LDS_BYTES}\n"
    out += '.amdgcn_target "amdgcn-amd-amdhsa--gfx950"\n'
    out += kernel()
    dst = [a for a in sys.argv[1:] if not a.startswith('--')]
    fn = dst[0] if dst else "out4.s"
    open(fn, "w").write(out)
    if STAMPS: open(fn + ".names", "w").write(NAMES)
if __name__ == "__main__":
    main()
```

```python
import sys, math, struct
import numpy as np
from asmlib import *

KNAME = "interleave_layers__spectral_gfnet__mixer_channel_mlp__prompt_kernel"
S, D, F = 2048, 448, 1792
STAMPS = '--stamps' in sys.argv
def opt(name, d):
    for a in sys.argv:
        if a.startswith(f'--{name}='):
            v = a.split('=')[1]
            return int(v) if isinstance(d, int) else v
    return d
BS = 57344
XSZ = 32 * BS
WSZ = 1792 * 448 * 2
HSZ = 2048 * 1792 * 2
XC0 = 0; WT = XSZ
XC1 = 2 * XSZ
RSP1 = XC1 + XSZ
RSP3 = RSP1 + 3584
XC2 = RSP1 + 32 * 7168
SSQ2 = XC2 + XSZ
XC3 = XC2 + 128 * 15 * 1024
RES = XC3 + XSZ
W1P = RES + 2 * XSZ
W2P = W1P + WSZ
W2T = W2P + WSZ
RS0 = W2T + WSZ
B2P = RS0 + 28 * 8192
ARR = B2P + 4096
F1 = ARR + 32768
F2 = F1 + 32768
HA = F2 + 8192
HB = HA + 1024
H1 = HB + 3072
H2 = H1 + HSZ if opt('h2sep', 0) else H1
STAMP = 64 << 20
WS_BYTES = 268435456
EPS = 1e-5
W0 = opt('w0', 3)
H0 = opt('h0', 4)
FORCE_SC = opt('fsc', 0)
PSC = " sc1" if opt('psc', 1) else ""
XSC = " sc1" if opt('xsc', 1) else ""
HSC = " sc1" if opt('hsc', 1) else ""
MF = "v_mfma_f32_16x16x32_bf16"
L_W1 = 0
L_R0 = 57344
L_R1 = L_R0 + 49152
LDS_BYTES = L_R1 + 57344
L_SQ = L_R1 + 55296
L_Q = L_R1 + 40960
LX, LW1, LW2, L_RS, LWW = 0, 57344, 73728, 151552, 155648
WS, DBG, T1, T2, T3 = 28, 32, 36, 40, 44
XS = DBG
O1, O2 = 64, 80
SW, SBUD, SB, SJ, SX, SI, SQ = 26, 27, 48, 49, 50, 51, 52
NON = 12
ACC = 16
TF1, TF2, TTW, TWW = 192, 208, 224, 240
VT = 251
FR = 252
V32, V8 = 254, 0
PF = "v[168:171]"
GA = 2 * 0.7978845608028654
GELU_A = GA * math.log2(math.e)
GELU_B = GA * 0.044715 * math.log2(math.e)
GK = GELU_B ** (1.0 / 3)
GC = GELU_A / GK

def bf16bits(a):
    a = np.ascontiguousarray(a, dtype=np.float32); u = a.view(np.uint32)
    return ((u + 0x7FFF + ((u >> 16) & 1)) >> 16).astype(np.uint16)
def S4(s): return f"s[{s}:{s+3}]"

slow_blocks = []
stamp_n = [0]
stamp_names = []
def stamp(b, name="?"):
    if not STAMPS: return
    b.I("s_memtime s[100:101]" if '--clk' in sys.argv else "s_memrealtime s[100:101]")
    b.I(f"v_writelane_b32 v255, s100, {stamp_n[0]}")
    stamp_n[0] += 1
    stamp_names.append(name)
    assert stamp_n[0] <= 62
def st(name): return lambda blk: stamp(blk, name)
def stamp_flush(b):
    if not STAMPS: return
    b.wait_vm(0)
    stamp(b, "end")
    b.I("s_lshl_b32 s53, s2, 2"); b.I(f"s_add_u32 s53, s53, s{SW}"); b.I("s_lshl_b32 s53, s53, 8"); b.I(f"s_add_u32 s53, s53, {STAMP}")
    b.I("s_mov_b64 exec, -1")
    b.I(f"v_writelane_b32 v255, s{SBUD}, 63")
    b.I("v_lshrrev_b32 v3, 2, v2")
    b.I(f"buffer_store_dword v255, v3, {S4(WS)}, s53 offen")

def srd(b, s, base_lo, off, size):
    if off is None or off == 0:
        b.I(f"s_mov_b32 s{s}, s{base_lo}"); b.I(f"s_mov_b32 s{s+1}, s{base_lo+1}")
    else:
        b.I(f"s_add_u32 s{s}, s{base_lo}, {off}"); b.I(f"s_addc_u32 s{s+1}, s{base_lo+1}, 0")
    b.I(f"s_mov_b32 s{s+2}, {size}"); b.I(f"s_mov_b32 s{s+3}, 0x20000")
def tab_srd(b, s, sym, off, size):
    b.I(f"s_getpc_b64 s[{s}:{s+1}]")
    b.I(f"s_add_u32 s{s}, s{s}, {sym}@rel32@lo+4")
    b.I(f"s_addc_u32 s{s+1}, s{s+1}, {sym}@rel32@hi+12")
    b.I(f"s_mov_b32 s{s+2}, {size}"); b.I(f"s_mov_b32 s{s+3}, 0x20000")
def div7(b, q, r, x):
    b.I(f"s_mul_i32 s{q}, s{x}, 293"); b.I(f"s_lshr_b32 s{q}, s{q}, 11")
    b.I(f"s_mul_i32 s{r}, s{q}, 7"); b.I(f"s_sub_u32 s{r}, s{x}, s{r}")
def s0_of_B(b, dst, B, t1):
    b.I(f"s_lshr_b32 s{dst}, s{B}, 3"); b.I(f"s_lshl_b32 s{dst}, s{dst}, 9")
    b.I(f"s_and_b32 s{t1}, s{B}, 4"); b.I(f"s_lshl_b32 s{t1}, s{t1}, 2"); b.I(f"s_add_u32 s{dst}, s{dst}, s{t1}")
    b.I(f"s_and_b32 s{t1}, s{B}, 3"); b.I(f"s_lshl_b32 s{t1}, s{t1}, 7"); b.I(f"s_add_u32 s{dst}, s{dst}, s{t1}")

def emit(b, x):
    if callable(x): x(b)
    elif isinstance(x, tuple): b.I(x[0], tag=x[1])
    else: b.I(x)
def emit_all(b, xs):
    for x in xs: emit(b, x)
def interleave(b, mf, fill, lead=0):
    n = len(mf) - lead
    k = 0
    for i, m in enumerate(mf):
        emit(b, m)
        if i >= lead:
            tgt = (len(fill) * (i - lead + 1) + n - 1) // n
            while k < tgt: emit(b, fill[k]); k += 1
    while k < len(fill): emit(b, fill[k]); k += 1
def mix(vm, va):
    out = []; k = 0
    for i, x in enumerate(va):
        while k < len(vm) and k * len(va) <= i * len(vm): out.append(vm[k]); k += 1
        out.append(x)
    return out + vm[k:]
def atom(*xs): return lambda blk: emit_all(blk, xs)

def mf16(acc, ra, rb, first, ka='v', kb='v', ms=range(4), ts=range(4), tx=0):
    out = []
    for m in ms:
        for t in ts:
            a = vr(acc + (m*4+(t^tx))*4, 4)
            out.append(f"{MF} {a}, {vr(ra+4*m,4,ka)}, {vr(rb+4*t,4,kb)}, {'0' if first else a}")
    return out

def retry_parts(name, test, reload_, window_tags=(), cond="vccnz"):
    def fin(b):
        b.I(f"s_cbranch_{cond} L_slow_{name}")
        b.label(f"L_back_{name}")
        sb = Block(); sb.label(f"L_slow_{name}")
        sb.I(f"s_sub_u32 s{SBUD}, s{SBUD}, 1")
        sb.I(f"s_cbranch_scc1 L_give_{name}")
        sb.I("s_sleep 1")
        reload_(sb)
        for t in test: sb.I(t)
        sb.I(f"s_cbranch_{cond} L_slow_{name}")
        need = None; foreign = False
        for x in reversed(b.vm):
            if x.tag in window_tags:
                if foreign: need = x.tag; break
            else: foreign = True
        if need is not None: sb.wait_vm_tag(need)
        sb.I(f"s_branch L_back_{name}")
        sb.label(f"L_give_{name}")
        sb.I(f"s_mov_b32 s{SBUD}, 0")
        sb.I("s_waitcnt vmcnt(0)")
        sb.I(f"s_branch L_back_{name}")
        slow_blocks.append(sb)
    if cond.startswith("scc"):
        return list(test[:-1]) + [atom(test[-1], fin)]
    return list(test) + [fin]
def retry(b, *a, **k):
    for x in retry_parts(*a, **k): emit(b, x)
def gaps(b, mf, g):
    for i, m in enumerate(mf):
        b.I(m)
        for x in g.get(i, []): emit(b, x)

def lds_addrs(b, base, va):
    for m in range(4):
        if m: b.I(f"v_xor_b32 v{va+m}, {m}, v1")
        b.I(f"v_mul_u32_u24 v{va+m}, {12*1024}, v{va+m if m else 1}")
        b.I(f"v_add3_u32 v{va+m}, v{va+m}, v2, s53")
def reduce4(b, base, tmp, va, mode='m', mid=None):
    b.I(f"s_mov_b32 s53, {base}")
    lds_addrs(b, base, va)
    for o in range(1, 4):
        for u in range(4):
            src = ACC + ((o*4+u) if mode != 't' else (u*4+o)) * 4
            slot = (o-1)*4 + u
            b.I(f"ds_write_b128 v{va+o}, {vr(src,4)} offset:{slot*1024}")
    if mid: mid(b)
    b.barrier()
    for i in range(12): b.I(f"ds_read_b128 {vr(tmp+4*i,4)}, v{va} offset:{i*1024}")
    for o in range(3):
        for u in range(4):
            own = ACC + (u if mode != 't' else u*4) * 4
            for h in range(2):
                a = vr(own + 2*h, 2)
                b.I(f"v_pk_add_f32 {a}, {a}, {vr(tmp+(o*4+u)*4+2*h,2)}")

def wave_only(b, name, fn, w=0):
    b.I(f"s_cmp_lg_u32 s{SW}, {w}")
    b.I(f"s_cbranch_scc1 L_{name}")
    st_ = b.opt_begin()
    fn(b)
    b.opt_end(st_)
    b.label(f"L_{name}")
def flag_set(b, name, soff, t=14, w=0):
    def f(blk):
        blk.I(f"v_mov_b32 v{t}, s{NON}"); blk.I(f"v_mov_b32 v{t+1}, s{NON+1}")
        blk.I("s_mov_b64 exec, 1")
        blk.I(f"buffer_store_dwordx2 {vr(t,2)}, off, {S4(WS)}, {soff} sc1")
        blk.I("s_mov_b64 exec, -1")
    wave_only(b, name, f, w)
def flag_issue(soff, va, r=FR):
    return (f"buffer_load_dwordx2 {vr(r,2)}, v{va}, {S4(WS)}, {soff} offen sc1", "poll")
def flag_parts(name, soff, va, mask=None, r=FR):
    rel = lambda q: (q.I("s_sleep 2"), emit(q, flag_issue(soff, va, r)))
    c = f"v_cmp_ne_u64 vcc, s[{NON}:{NON+1}], {vr(r,2)}"
    if mask is None: return retry_parts(name, [c], rel)
    return retry_parts(name, [c, f"s_and_b32 s98, vcc_lo, {mask}"], rel, cond="scc1")
def flag_check(b, *a, **k):
    for x in flag_parts(*a, **k): emit(b, x)

INV448 = 1.0 / 448
AMP = math.sqrt(2.0 / 448)
QF = 16
def qgen():
    C, TH, PH, AM, K2, A0 = 96, 97, 98, 100, 102, 104
    Y = [112, 120, 128]
    o = ["v_and_b32 v99, 1, v3", f"v_lshrrev_b32 v{C}, 1, v3", "s_lshl_b32 s53, s3, 3", f"v_add_u32 v{C}, s53, v{C}",
         f"v_cvt_f32_u32 v{PH}, v99", f"v_mul_f32 v{PH}, {f32hex(0.25)}, v{PH}",
         "v_mul_u32_u24 v99, 224, v99", "v_sub_u32 v99, 224, v99",
         f"v_mov_b32 v{AM}, {f32hex(AMP)}", f"v_mov_b32 v{AM+1}, {f32hex(AMP / math.sqrt(2))}",
         f"s_mov_b32 s56, {f32hex(INV448)}", f"s_mov_b32 s57, {f32hex(-448.0)}",
         f"v_cmp_eq_u32 vcc, 0, v{C}", f"v_cndmask_b32 v{C}, v{C}, v99, vcc", f"v_cndmask_b32 v{PH}, v{PH}, 0, vcc", f"v_cndmask_b32 v{AM}, v{AM}, v{AM+1}, vcc",
         f"v_cvt_f32_u32 v{C}, v{C}", f"s_lshl_b32 s53, s{SJ}, 6", "v_lshl_add_u32 v99, v4, 3, s53", "v_cvt_f32_u32 v99, v99",
         f"v_mul_f32 v{TH}, s56, v{C}", f"v_mul_f32 v99, v99, v{C}", f"v_mul_f32 v{A0}, s56, v99", f"v_mul_f32 v{K2}, {f32hex(32.0)}, v{TH}",
         f"v_rndne_f32 v{A0}, v{A0}", f"v_fract_f32 v{K2}, v{K2}", f"v_fma_f32 v99, v{A0}, s57, v99", f"v_fma_f32 v{A0}, v99, s56, v{PH}",
         f"v_add_f32 v{A0+1}, v{A0}, v{K2}", f"v_cos_f32 v{K2}, v{K2}"]
    for h in range(2):
        o += [f"v_fmamk_f32 v{Y[h]+e}, v{TH}, {f32hex(e)}, v{A0+h}" for e in range(1, 8)]
        o += [f"v_cos_f32 v{Y[h]}, v{A0+h}"] + [f"v_cos_f32 v{Y[h]+e}, v{Y[h]+e}" for e in range(1, 8)]
    o += [f"v_add_f32 v{K2}, v{K2}, v{K2}"]
    for h in range(2): o += [f"v_pk_mul_f32 {vr(Y[h]+e,2)}, {vr(Y[h]+e,2)}, {vr(AM,2)} op_sel_hi:[1,0]" for e in range(0, 8, 2)]
    for i in range(14):
        y = Y[i % 3]
        if i >= 2: o += [f"v_pk_fma_f32 {vr(y+e,2)}, {vr(K2,2)}, {vr(Y[(i-1)%3]+e,2)}, {vr(Y[(i-2)%3]+e,2)} op_sel_hi:[0,1,1] neg_lo:[0,0,1] neg_hi:[0,0,1]" for e in range(0, 8, 2)]
        o += [f"v_cvt_pk_bf16_f32 v{QF+4*i+u}, v{y+2*u}, v{y+2*u+1}" for u in range(4)]
    return o
def coltab(t):
    o = []
    A, Bs, SG, P = t, t + 1, t + 2, t + 4
    def frag(dst, sgn):
        r = []
        for e in range(8): r.append(f"v_fmamk_f32 v{P+e}, v{A}, {f32hex(16*(e >> 2) + (e & 3))}, v{Bs}")
        for e in range(8): r.append(f"v_sin_f32 v{P+8+e}, v{P+e}")
        for e in range(8): r.append(f"v_cos_f32 v{P+e}, v{P+e}")
        for fn in (1, 0):
            for i in range(4): r.append(f"v_cvt_pk_bf16_f32 v{dst+8*fn+i}, v{P+8*fn+2*i}, v{P+8*fn+2*i+1}")
        for fn in (1, 0):
            for i in range(4): r.append(f"v_xor_b32 v{dst+8*fn+4+i}, {sgn}, v{dst+8*fn+i}")
        return r
    o += [f"v_cvt_f32_u32 v{t+3}, v4", f"v_cvt_f32_u32 v{A}, v3", f"v_mul_f32 v{A}, {f32hex(1/32)}, v{A}", f"v_mul_f32 v{t+3}, 4.0, v{t+3}", f"v_mul_f32 v{Bs}, v{A}, v{t+3}"]
    o += frag(TF2, "0x80000000")
    o += [f"v_lshl_add_u32 v{A}, v1, 4, v3", f"v_cvt_f32_u32 v{A}, v{A}", f"v_mul_f32 v{A}, {f32hex(1/64)}, v{A}", f"v_mul_f32 v{Bs}, v{A}, v{t+3}",
          f"v_and_b32 v{SG}, 1, v3", f"v_mul_u32_u24 v{SG}, 0x8000, v{SG}", f"v_lshl_or_b32 v{SG}, v{SG}, 16, v{SG}"]
    o += frag(TF1, f"v{SG}")
    o += [f"v_mul_f32 v{A}, {f32hex(1/32)}, v{A}", f"v_mul_f32 v{Bs}, {f32hex(1/32)}, v{Bs}"]
    o += [f"v_fmamk_f32 v{P+e}, v{A}, {f32hex(16*(e >> 2) + (e & 3))}, v{Bs}" for e in range(8)]
    o += [f"v_cos_f32 v{TTW+e}, v{P+e}" for e in range(8)] + [f"v_sin_f32 v{TTW+8+e}, v{P+e}" for e in range(8)]
    return o
def qtgen(t):
    DV, GD, SP, AD, P, Qn, Sn, O = t, t + 1, t + 2, t + 3, t + 4, t + 8, t + 12, t + 16
    E = int(bf16bits(np.array([1 / math.sqrt(448)]))[0])
    o = [f"v_lshrrev_b32 v{DV}, 2, v3", f"v_and_b32 v{GD}, 3, v3", f"v_lshl_add_u32 v{DV}, v{DV}, 4, v{GD}",
         f"s_lshr_b32 s53, s{SI}, 2", "s_lshl_b32 s53, s53, 6", f"s_and_b32 s55, s{SI}, 3", "s_lshl_b32 s55, s55, 2", "s_add_u32 s53, s53, s55",
         f"v_add_u32 v{DV}, s53, v{DV}", f"v_cvt_f32_u32 v{DV}, v{DV}",
         f"v_and_b32 v{SP}, 1, v3", f"v_lshlrev_b32 v{SP}, 15, v{SP}", f"v_or_b32 v{SP}, {(E << 16) | E}, v{SP}",
         f"v_or_b32 v{GD}, v1, v4", f"v_cmp_eq_u32 s[58:59], 0, v{GD}",
         f"s_mov_b32 s56, {f32hex(INV448)}", f"s_mov_b32 s57, {f32hex(-448.0)}", f"s_mov_b32 s62, {f32hex(AMP)}", f"s_mov_b32 s63, {f32hex(-AMP)}",
         f"s_lshr_b32 s60, s{SI}, 1"]
    for i in range(4):
        Oi = O + 4 * (i & 1)
        o += [atom(f"s_add_u32 s53, s{SW}, {4*i}", "s_min_u32 s53, s53, 13", "s_lshl_b32 s55, s53, 4", f"v_lshl_add_u32 v{GD}, v4, 1, s55", f"v_cvt_f32_u32 v{GD}, v{GD}",
              "s_sub_u32 s53, s53, s60", "s_add_u32 s55, s53, 14", "s_cmp_lt_i32 s53, 0", "s_cselect_b32 s53, s55, s53", "s_lshl_b32 s53, s53, 10", f"s_add_u32 s53, s53, {L_Q}",
              f"v_mul_f32 v{P}, v{GD}, v{DV}", f"v_add_u32 v{AD}, s53, v2")]
        o += [f"v_fmamk_f32 v{P+u}, v{DV}, {f32hex((0, 1, 8, 9)[u])}, v{P}" for u in range(1, 4)]
        o += [f"v_pk_mul_f32 {vr(Qn+2*h,2)}, {vr(P+2*h,2)}, s[56:57] op_sel_hi:[1,0]" for h in range(2)]
        o += [f"v_rndne_f32 v{Qn+u}, v{Qn+u}" for u in range(4)]
        o += [f"v_pk_fma_f32 {vr(P+2*h,2)}, {vr(Qn+2*h,2)}, s[56:57], {vr(P+2*h,2)} op_sel:[0,1,0] op_sel_hi:[1,1,1]" for h in range(2)]
        o += [f"v_pk_mul_f32 {vr(P+2*h,2)}, {vr(P+2*h,2)}, s[56:57] op_sel_hi:[1,0]" for h in range(2)]
        o += [f"v_cos_f32 v{Qn+u}, v{P+u}" for u in range(4)] + [f"v_sin_f32 v{Sn+u}, v{P+u}" for u in range(4)]
        o += [f"v_pk_mul_f32 {vr(Qn+2*h,2)}, {vr(Qn+2*h,2)}, s[62:63] op_sel_hi:[1,0]" for h in range(2)]
        o += [f"v_pk_mul_f32 {vr(Sn+2*h,2)}, {vr(Sn+2*h,2)}, s[62:63] op_sel:[0,1] op_sel_hi:[1,1]" for h in range(2)]
        o += [f"v_cvt_pk_bf16_f32 v{Oi+u}, v{Qn+u}, v{Sn+u}" for u in range(4)]
        if i == 0: o += [f"v_cndmask_b32 v{Oi}, v{Oi}, v{SP}, s[58:59]"]
        o += [f"ds_write_b128 v{AD}, {vr(Oi,4)}"]
    return o

CX, CSQ, CRS = 176, 104, 184
def col_loads(nparts):
    out = [(f"buffer_load_dwordx4 {vr(CX+4*nt,4)}, v{248+nt}, {S4(WS)}, s78 offen sc1", "cx") for nt in range(2)]
    sq = CSQ if nparts else CRS
    for p in range(max(nparts, 1)):
        ld = [(f"buffer_load_dwordx4 {vr(sq+8*p+4*nt,4)}, v2, {S4(WS)}, s{99 if p else 79} offen offset:{1024*nt} sc1", "cx") for nt in range(2)]
        if p: ld[0] = atom(f"s_add_u32 s99, s79, {p*8192}", ld[0])
        out += ld
    return out
def col_setup(xin, ssq):
    return [f"s_add_u32 s78, s54, {xin}", f"s_lshl_b32 s79, s{SW}, 11", f"s_add_u32 s79, s79, {ssq}"]
def col_wt():
    return [f"buffer_load_dwordx4 {vr(TWW+4*nt,4)}, v2, {S4(WS)}, s95 offen offset:{1024*nt}{PSC}" for nt in range(2)]
def col(b, name, xout, nparts, LB, pre_b1=None, post_b1=None, pre_b2=None, post_b2=None, pre_st=None, f1=(), f2=(), f3=(), f4=(), f5=(), f6=(), lfill=(), pre_in=None):
    X, SQ, RS = CX, CSQ, (24 if nparts else CRS)
    N1, N2 = 48, 56
    T, XR, XI, ZI, ZR = 64, 72, 80, 88, 96
    A, DR, DI, WR, WI, E = 104, 136, 144, 152, 160, 32
    PR, PI, BR, BI = 88, 96, 64, 68
    b.I("s_cmp_eq_u32 s2, 0")
    b.I("s_cselect_b32 s57, 0, 0xffff0000")
    b.I(f"s_cselect_b32 s58, 0, {f32hex(1.0/2048)}")
    b.I(f"s_mov_b32 s59, {f32hex(1.0/2048)}")
    b.I("s_mov_b32 s60, 0x80008000")
    b.I(f"s_mov_b32 s62, {f32hex(1.0/448)}"); b.I(f"s_mov_b32 s63, {f32hex(EPS)}")
    b.I("v_lshrrev_b32 v12, 1, v1"); b.I("v_lshl_add_u32 v12, v12, 10, v2")
    b.I("v_and_b32 v13, 1, v1"); b.I("v_lshl_add_u32 v12, v13, 3, v12"); b.I(f"v_add_u32 v12, {LB}, v12")
    b.I("v_lshlrev_b32 v13, 9, v1"); b.I("v_lshl_add_u32 v13, v3, 5, v13"); b.I("v_lshl_add_u32 v13, v4, 3, v13"); b.I(f"v_add_u32 v13, {LB}, v13")
    LA, LT = 10, 11
    b.I(f"v_add_u32 v{LA}, {LB}, v2")
    b.I(f"v_lshrrev_b32 v{LT}, 1, v2"); b.I(f"v_add_u32 v{LT}, {LB}, v{LT}")
    for i in range(8): b.I(f"v_xor_b32 v{N1+i}, s60, v{TF1+8+i}")
    for i in range(8): b.I(f"v_xor_b32 v{N2+i}, s60, v{TF2+8+i}")
    CK = 16
    if pre_in: pre_in(b)
    def rel(blk): emit_all(blk, col_loads(nparts))
    unp = [f"v_lshlrev_b32 v{XR+i}, 16, v{X+i}" for i in range(8)] + [f"v_and_b32 v{ZI+i}, s57, v{X+i}" for i in range(8)]
    if nparts:
        test = [f"v_max_u32 v{CK}, v{X}, v{X+4}"] + unp
        src = SQ
        for p in range(1, nparts):
            test += [f"v_pk_add_f32 {vr(RS+i,2)}, {vr(src+i,2)}, {vr(SQ+8*p+i,2)}" for i in range(0, 8, 2)]
            src = RS
        test += [f"v_cmp_eq_u32 s[98:99], -1, v{CK}"]
        test += [f"v_pk_fma_f32 {vr(RS+i,2)}, {vr(src+i,2)}, s[62:63], s[62:63] op_sel:[0,0,1] op_sel_hi:[1,0,1]" for i in range(0, 8, 2)]
        test += [f"v_pk_add_f32 v[18:19], {vr(RS,2)}, {vr(RS+2,2)}", f"v_pk_add_f32 v[20:21], {vr(RS+4,2)}, {vr(RS+6,2)}",
                 "v_pk_add_f32 v[18:19], v[18:19], v[20:21]", "v_cmp_u_f32 vcc, v18, v19", "s_or_b64 vcc, vcc, s[98:99]"]
        retry(b, name + "x", test, rel, ("cx",), cond="scc1")
        stamp(b, name + "_in")
        for i in range(8): b.I(f"v_rsq_f32 v{RS+i}, v{RS+i}")
    else:
        emit_all(b, unp)
        b.wait_vm_tag("cx")
        stamp(b, name + "_in")
    for i in range(0, 8, 2): b.I(f"v_pk_mul_f32 {vr(ZR+i,2)}, {vr(XR+i,2)}, {vr(RS+i,2)}")
    for i in range(0, 8, 2): b.I(f"v_pk_mul_f32 {vr(ZI+i,2)}, {vr(ZI+i,2)}, {vr(RS+i,2)}")
    for i in range(4): b.I(f"v_cvt_pk_bf16_f32 v{T+i}, v{ZR+2*i}, v{ZR+2*i+1}")
    for i in range(4): b.I(f"v_cvt_pk_bf16_f32 v{T+4+i}, v{ZI+2*i}, v{ZI+2*i+1}")
    for p in range(2):
        for mt in range(2):
            b.I(f"ds_write_b64 v12, {vr(T+4*p+2*mt,2)} offset:{(p*2+mt)*2048}")
    for i in range(8): b.I(f"v_and_b32 v{XI+i}, 0xffff0000, v{X+i}")
    if pre_b1: pre_b1(b)
    b.barrier()
    for i in range(8): b.I(f"ds_read_b128 {vr(A+4*i,4)}, v{LA} offset:{i*1024}")
    if post_b1: post_b1(b)
    def Af(p, mt, ks): return vr(A + ((p*2+mt)*2+ks)*4, 4)
    C1 = lambda ks: vr(TF1+4*ks, 4); S1 = lambda ks: vr(TF1+8+4*ks, 4); M1 = lambda ks: vr(N1+4*ks, 4)
    C2 = lambda m: vr(TF2+4*m, 4); S2 = lambda m: vr(TF2+8+4*m, 4); M2 = lambda m: vr(N2+4*m, 4)
    dr = lambda mt: vr(DR+4*mt, 4); di = lambda mt: vr(DI+4*mt, 4)
    mf = []
    for ks in range(2):
        for mt in range(2):
            mf.append(f"{MF} {dr(mt)}, {Af(0,mt,ks)}, {C1(ks)}, {'0' if ks==0 else dr(mt)}")
            mf.append(f"{MF} {di(mt)}, {Af(0,mt,ks)}, {M1(ks)}, {'0' if ks==0 else di(mt)}")
    for ks in range(2):
        for mt in range(2):
            mf.append(f"{MF} {dr(mt)}, {Af(1,mt,ks)}, {S1(ks)}, {dr(mt)}")
            mf.append(f"{MF} {di(mt)}, {Af(1,mt,ks)}, {C1(ks)}, {di(mt)}")
    interleave(b, mf, list(f1))
    TC, TS = TTW, TTW + 8
    def cmul(ar_, ai_, br_, bi_, conj, fill):
        ng = "neg_lo:[1,0,0] neg_hi:[1,0,0]"
        o = [f"v_pk_mul_f32 {vr(PR+i,2)}, {vr(ar_+i,2)}, {vr(br_+i,2)}" for i in range(0, 8, 2)]
        o += [f"v_pk_mul_f32 {vr(PI+i,2)}, {vr(ai_+i,2)}, {vr(br_+i,2)}" for i in range(0, 8, 2)]
        o += [f"v_pk_fma_f32 {vr(PR+i,2)}, {vr(ai_+i,2)}, {vr(bi_+i,2)}, {vr(PR+i,2)} {'' if conj else ng}" for i in range(0, 8, 2)]
        o += [f"v_pk_fma_f32 {vr(PI+i,2)}, {vr(ar_+i,2)}, {vr(bi_+i,2)}, {vr(PI+i,2)} {ng if conj else ''}" for i in range(0, 8, 2)]
        o += [f"v_cvt_pk_bf16_f32 v{BR+i}, v{PR+2*i}, v{PR+2*i+1}" for i in range(4)]
        o += [f"v_cvt_pk_bf16_f32 v{BI+i}, v{PI+2*i}, v{PI+2*i+1}" for i in range(4)]
        emit_all(b, mix(list(fill), o))
    br, bi = vr(BR, 4), vr(BI, 4)
    er = lambda m: vr(E+4*m, 4); ei = lambda m: vr(E+8+4*m, 4)
    cmul(DR, DI, TC, TS, True, f2)
    mf = []
    for m in range(2): mf += [f"{MF} {er(m)}, {C2(m)}, {br}, 0", f"{MF} {ei(m)}, {M2(m)}, {br}, 0"]
    for m in range(2): mf += [f"{MF} {er(m)}, {S2(m)}, {bi}, {er(m)}", f"{MF} {ei(m)}, {C2(m)}, {bi}, {ei(m)}"]
    interleave(b, mf, mix(list(f3), [f"v_lshlrev_b32 v{WR+i}, 16, v{TWW+i}" for i in range(8)] + [f"v_and_b32 v{WI+i}, 0xffff0000, v{TWW+i}" for i in range(8)]))
    cmul(E, E + 8, WR, WI, False, f4)
    mf = []
    for m in range(2): mf += [f"{MF} {dr(m)}, {C2(m)}, {br}, 0", f"{MF} {di(m)}, {S2(m)}, {br}, 0"]
    for m in range(2): mf += [f"{MF} {dr(m)}, {M2(m)}, {bi}, {dr(m)}", f"{MF} {di(m)}, {C2(m)}, {bi}, {di(m)}"]
    interleave(b, mf, list(f5))
    cmul(DR, DI, TC, TS, False, f6)
    for p in range(2):
        for mt in range(2):
            b.I(f"ds_write_b64 v13, {vr((BR, BI)[p]+2*mt,2)} offset:{8192+(p*2+mt)*2048}")
    if pre_b2: pre_b2(b)
    b.barrier()
    for p in range(2):
        for nt in range(2):
            for ks in range(2):
                for hh in range(2):
                    r = A + ((p*2+nt)*2+ks)*4 + 2*hh
                    b.I(f"ds_read_b64_tr_b16 {vr(r,2)}, v{LT} offset:{8192+(p*2+nt)*2048+(32*ks+16*hh)*32}")
    if post_b2: post_b2(b)
    mf = []
    for ks in range(2):
        for nt in range(2):
            mf.append(f"{MF} {er(nt)}, {C1(ks)}, {Af(0,nt,ks)}, {'0' if ks==0 else er(nt)}")
            mf.append(f"{MF} {ei(nt)}, {S1(ks)}, {Af(0,nt,ks)}, {'0' if ks==0 else ei(nt)}")
    for nt in range(2):
        for ks in range(2):
            mf.append(f"{MF} {er(nt)}, {M1(ks)}, {Af(1,nt,ks)}, {er(nt)}")
            mf.append(f"{MF} {ei(nt)}, {C1(ks)}, {Af(1,nt,ks)}, {ei(nt)}")
    lf = list(lfill)
    emit_all(b, lf[:2])
    interleave(b, mf, lf[2:])
    b.I(f"s_add_u32 s55, s54, {xout}")
    if pre_st: pre_st(b)
    for nt in range(2):
        for i in range(4*nt, 4*nt+4):
            b.I(f"v_fma_f32 v{XR+i}, v{E+i}, s59, v{XR+i}")
            b.I(f"v_fma_f32 v{XI+i}, v{E+8+i}, s58, v{XI+i}")
        for i in range(4*nt, 4*nt+4):
            b.I(f"v_cvt_pk_bf16_f32 v{T+i}, v{XR+i}, v{XI+i}")
        b.I(f"buffer_store_dwordx4 {vr(T+4*nt,4)}, v{248+nt}, {S4(WS)}, s55 offen sc1", tag="cst")
    stamp(b, name + "_end")

RAW, R1, AF = 80, 8, 208
HRS, R2 = [144, 160, 176, 192, 80, 96], 6
RSV = 240
EA, EQ = 232, 248
def g1_offsets():
    o = [f"s_lshl_b32 s53, s{SX}, 2", f"s_add_u32 s53, s53, s{SW}", f"s_mul_i32 s94, s53, {BS}", f"s_lshr_b32 s55, s{SI}, 1"]
    for s in range(14):
        o += [f"s_lshl_b32 s{O1+s}, s55, 12", f"s_add_u32 s{O1+s}, s{O1+s}, s94", "s_add_u32 s55, s55, 1", "s_cmp_eq_u32 s55, 14", "s_cselect_b32 s55, 0, s55"]
    return o
def g1_loads(s, sc=None):
    if sc is None: sc = XSC
    r = RAW + (s % R1) * 16
    return [(f"buffer_load_dwordx4 {vr(r+4*i,4)}, v{VT}, {S4(XS)}, s{O1+s} offen offset:{2048*(i>>1)+256*(i&1)}{sc}", ("X", s)) for i in range(4)]
def put(g, gap, items, per=1, step=1, last=15):
    for i, x in enumerate(items): g.setdefault(min(gap + (i // per) * step, last), []).append(x)
def rowsum4(Q):
    return [f"v_permlane32_swap_b32 v{Q}, v{Q+2}", f"v_permlane32_swap_b32 v{Q+1}, v{Q+3}", f"v_add_f32 v{Q}, v{Q}, v{Q+2}", f"v_add_f32 v{Q+1}, v{Q+1}, v{Q+3}",
            f"v_permlane16_swap_b32 v{Q}, v{Q+1}", f"v_add_f32 v{Q}, v{Q}, v{Q+1}"]
def g1_pre(rsp):
    return ["s_mov_b32 s4, 0xaaaaaaaa", "s_mov_b32 s5, s4", "s_mov_b32 s6, 0xcccccccc", "s_mov_b32 s7, s6",
            f"s_add_u32 s8, s{O1}, s94", "s_lshr_b32 s8, s8, 4", f"s_add_u32 s8, s8, {rsp}", "s_lshr_b32 s9, s94, 3", f"s_add_u32 s9, s9, {rsp}",
            f"s_lshr_b32 s53, s{SI}, 1", "v_or_b32 v15, s53, v4", "v_cmp_eq_u32 vcc, 0, v15", "v_mov_b32 v14, 0xffff", "v_cndmask_b32 v15, -1, v14, vcc",
            f"v_add_u32 v14, {L_Q}, v2"]

def g1(b, name, ext, extra):
    wtags = [("X", s) for s in range(14)]
    o = 4 if ext else 0
    def parts(s, hi):
        r = RAW + (s % R1) * 16; a = AF + (s & 1) * 16
        rd = [f"ds_read_b128 {vr(a+4*m,4)}, v2 offset:{(s*4+m)*1024}" for m in range(4)]
        if ext: rd = [f"ds_read_b128 {vr(EQ+4*(s&1),4,'a')}, v14 offset:{s*1024}"] + rd
        def rel(q):
            for s2 in range(s, min(hi, 14)):
                for l in g1_loads(s2, " sc1"): emit(q, l)
        ck = retry_parts(f"{name}_{s}", [f"v_max3_u32 v9, v{r}, v{r+4}, v{r+8}", f"v_max_u32 v9, v9, v{r+12}", "v_cmp_eq_u32 vcc, -1, v9"], rel, wtags)
        sw = [f"v_swap_b32 v{r+4*i+t}, v{r+4*t+i}" for i in range(4) for t in range(i)]
        return rd, ck, sw
    rd, ck, sw = parts(0, W0)
    for x in rd + ck: emit(b, x)
    stamp(b, name + "_first")
    emit_all(b, sw)
    pend = [l for s in range(W0, R1 - 1) for l in g1_loads(s)]
    msk = [f"v_and_b32 v{RAW+4*t}, v15, v{RAW+4*t}" for t in range(4)]
    if not ext: emit_all(b, msk)
    def sel(t): return [f"v_cndmask_b32 v{10+t}, v{240+4*(t&1)}, v{241+4*(t&1)}, s[4:5]", f"v_cndmask_b32 v{240+4*(t&1)}, v{242+4*(t&1)}, v{243+4*(t&1)}, s[4:5]",
                        f"v_cndmask_b32 v{10+t}, v{10+t}, v{240+4*(t&1)}, s[6:7]"]
    def rs_st(blk):
        blk.I("s_mov_b32 exec_lo, 0x00f0000f"); blk.I("s_mov_b32 exec_hi, 0xf0000f00")
        blk.I(f"buffer_store_dwordx4 v[10:13], v250, {S4(WS)}, s8 offen sc1")
        blk.I("s_mov_b64 exec, -1")
    PR, SM = RAW + 6*16, RAW + 7*16
    def rs_ld3(blk):
        blk.I("s_mov_b32 exec_hi, 0")
        blk.I(f"buffer_load_dwordx4 {vr(PR+12,4)}, v2, {S4(WS)}, s9 offen offset:3072 sc1", tag="rs")
        blk.I("s_mov_b64 exec, -1")
    rs_ld = [(f"buffer_load_dwordx4 {vr(PR+4*i,4)}, v2, {S4(WS)}, s9 offen offset:{1024*i} sc1", "rs") for i in range(3)] + [rs_ld3]
    rs_t = [f"v_add_f32 v{SM+t}, v{PR+t}, v{PR+4+t}" for t in range(4)] + [f"v_add_f32 v{SM+4+t}, v{PR+8+t}, v{PR+12+t}" for t in range(4)] + \
           [f"v_add_f32 v{SM+t}, v{SM+t}, v{SM+4+t}" for t in range(4)] + rowsum4(SM) + [f"v_cmp_u_f32 vcc, v{SM}, v{SM}"]
    rs_c = [f"v_mov_b32 v{SM+2}, {f32hex(EPS)}", f"v_mul_f32 v{SM}, {f32hex(1.0/448)}, v{SM}", f"v_add_f32 v{SM+1}, v{SM}, v{SM+2}", f"v_rsq_f32 v{SM+1}, v{SM+1}",
            f"v_mul_f32 v{SM}, v{SM}, v{SM+1}", f"v_fma_f32 v{SM}, v{SM}, v{SM+1}, v{SM+2}", f"v_rsq_f32 v{SM}, v{SM}", f"v_mul_f32 v{SM+1}, {f32hex(GK)}, v{SM+1}",
            f"v_mul_f32 v{RSV}, v{SM}, v{SM+1}", f"v_mul_f32 v{RSV+1}, v{SM}, v{SM+1}", f"v_permlane16_swap_b32 v{RSV}, v{RSV+1}",
            f"v_mov_b32 v{RSV+2}, v{RSV}", f"v_mov_b32 v{RSV+3}, v{RSV+1}", f"v_permlane32_swap_b32 v{RSV}, v{RSV+2}", f"v_permlane32_swap_b32 v{RSV+1}, v{RSV+3}"]
    for s in range(14):
        g = {}
        r = RAW + (s % R1) * 16
        M = mf16(ACC, AF + (s & 1)*16, r, s == 0)
        E = [f"{MF} {vr(EA+4*t,4,'a')}, {vr(EQ+4*(s&1),4,'a')}, {vr(r+4*t,4)}, {'0' if s == 0 else vr(EA+4*t,4,'a')}" for t in range(4)] if ext else []
        Sq = [f"{MF} {vr(240+4*(t&1),4)}, {vr(r+4*t,4)}, {vr(r+4*t,4)}, 0" for t in range(4)]
        mf = E + M
        oo = o
        if s == 0:
            mf = E + M[:2] + Sq[:2] + M[2:11] + Sq[2:] + M[11:]
            if ext: put(g, 1, msk)
            put(g, o + 8, sel(0) + sel(1), 2)
            oo = o + 4
        last = len(mf) - 1
        if s == 1: put(g, 0, sel(2) + sel(3), 2); put(g, 3, [rs_st])
        ld = g1_loads(s + R1 - 1) if s + R1 - 1 < 14 else []
        if pend:
            pend += ld; n = len(mf) // 2
            put(g, 0, pend[:n], 1, 2, last); pend = pend[n:]
        else: put(g, 0, ld, 1, 4, last)
        if s + 1 < 14:
            rd, ck, sw = parts(s + 1, s + R1)
            put(g, oo + 1 - (o > 0), rd, last=last); put(g, oo + 5, ck, last=last); put(g, oo + 9, sw, last=last)
        if s == 7: put(g, 1, [f"v_mov_b32 v{PR+12+t}, 0" for t in range(4)], 2)
        if s == 8: put(g, 0, rs_ld, 1, 4)
        if s == 12: put(g, 0, retry_parts(name + "rs", rs_t, lambda q: emit_all(q, rs_ld), ("rs",)), 2 if not ext else 1, last=last)
        if s == 13: put(g, 0, rs_c, last=last)
        for gap, items, per, st in extra.get(s, []): put(g, gap, items, per, st, last)
        gaps(b, mf, g)
        if s in (2, 6, 10): stamp(b, f"{name}_s{s}")
    stamp(b, name + "_main")

def g1_epilogue(b, name, hbuf, fills):
    SS = RSV
    B1, TT = 208, 224
    for i in range(8): b.I(f"v_accvgpr_read_b32 v{B1+2*i+1}, a{224+i}")
    for i in range(8):
        b.I(f"v_lshlrev_b32 v{B1+2*i}, 16, v{B1+2*i+1}")
        b.I(f"v_and_b32 v{B1+2*i+1}, 0xffff0000, v{B1+2*i+1}")
    b.I(f"s_mov_b32 s56, {f32hex(GC)}"); b.I(f"s_mov_b32 s57, {f32hex(GK)}")
    for i in range(8): b.I(f"v_pk_mul_f32 {vr(B1+2*i,2)}, {vr(B1+2*i,2)}, s[56:57] op_sel:[0,1] op_sel_hi:[1,1]")
    b.I(f"s_add_u32 s55, s61, {hbuf}")
    for h in range(2):
        ops = []
        for tp in range(2):
            items = [(m, t, hf) for t in (2*tp, 2*tp+1) for m in (2*h, 2*h+1) for hf in range(2)]
            acc = lambda it: vr(ACC + (it[0]*4+it[1])*4 + 2*it[2], 2)
            T = lambda i: vr(TT+2*i, 2)
            for i, it in enumerate(items):
                o = it[1] & 1
                ops.append(f"v_pk_fma_f32 {acc(it)}, {acc(it)}, {vr(SS+(it[1]&2),2)}, {vr(B1+4*it[0]+2*it[2],2)} op_sel:[0,{o},0] op_sel_hi:[1,{o},1]")
            for i, it in enumerate(items): ops.append(f"v_pk_fma_f32 {T(i)}, {acc(it)}, {acc(it)}, s[56:57] op_sel_hi:[1,1,0]")
            for i, it in enumerate(items): ops.append(f"v_pk_mul_f32 {T(i)}, {T(i)}, {acc(it)} neg_lo:[1,0] neg_hi:[1,0]")
            for i in range(16): ops.append(f"v_exp_f32 v{TT+i}, v{TT+i}")
            for i in range(8): ops.append(f"v_pk_fma_f32 {T(i)}, {T(i)}, s[56:57], s[56:57] op_sel:[0,1,1] op_sel_hi:[1,1,1]")
            for i in range(16): ops.append(f"v_rcp_f32 v{TT+i}, v{TT+i}")
            for i, it in enumerate(items): ops.append(f"v_pk_mul_f32 {T(i)}, {T(i)}, {acc(it)}")
            for i in range(8): ops.append(f"v_cvt_pk_bf16_f32 v{TT+i}, v{TT+2*i}, v{TT+2*i+1}")
            def hst(blk, nm=f"{name}h{h}{tp}", tp=tp):
                st = [f"buffer_store_dwordx4 {vr(TT+4*u,4)}, v2, {S4(WS)}, s55 offen offset:{1024*(2*tp+u)}" for u in range(2)]
                blk.I("s_cmp_lg_u32 s10, 0"); blk.I(f"s_cbranch_scc1 L_alt_{nm}")
                for x in st: blk.I(x)
                blk.label(f"L_ret_{nm}")
                v = Block(); v.label(f"L_alt_{nm}")
                for x in st: v.I(x + " sc1")
                v.I(f"s_branch L_ret_{nm}")
                slow_blocks.append(v)
            ops.append(hst)
        interleave(b, ops, fills[h])
        if h == 0: b.I("s_add_u32 s55, s55, 4096"); stamp(b, name + "_e0")
    stamp(b, name + "_epi")

def g2_offsets():
    o = [f"s_mul_i32 s60, s{SW}, {14*4096}", f"s_lshl_b32 s62, s{SQ}, 1", f"s_add_u32 s62, s62, s{SJ}", "s_sub_u32 s63, s62, 7", atom("s_cmp_ge_u32 s62, 7", "s_cselect_b32 s62, s63, s62")]
    for s in range(7):
        o += [f"s_lshl_b32 s{O2+s}, s62, 13", f"s_add_u32 s{O2+s}, s{O2+s}, s60", f"s_add_u32 s{O2+7+s}, s{O2+s}, 4096",
              "s_add_u32 s62, s62, 1", atom("s_cmp_eq_u32 s62, 7", "s_cselect_b32 s62, 0, s62")]
    return o
def w2_loads(layer, T):
    out = []
    for s in range(14):
        for m in range(4):
            if layer == 0: out.append(f"buffer_load_dwordx4 {vr((s*4+m)*4,4,'a')}, v{5+m}, {S4(T)}, s{O2+s} offen{PSC}")
            else: out.append(f"buffer_load_dwordx4 {vr((s*4+m)*4,4,'a')}, v2, {S4(T)}, s{O2+s} offen offset:{1024*m}{PSC}")
    return out
def h_loads(s, layer, sc=None):
    if sc is None: sc = HSC
    r = HRS[s % R2]
    if layer == 0: return [(f"buffer_load_dwordx4 {vr(r+4*t,4)}, v2, {S4(T2)}, s{O2+s} offen offset:{1024*t}{sc}", ("H", s)) for t in range(4)]
    return [(f"buffer_load_dwordx4 {vr(r+4*t,4)}, v{5+t}, {S4(T2)}, s{O2+s} offen{sc}", ("H", s)) for t in range(4)]
def g2_main(b, name, layer, extra):
    wtags = [("H", s) for s in range(14)]
    def chk(s, hi):
        r = HRS[s % R2]
        def rel(q):
            for s2 in range(s, min(hi, 14)):
                for l in h_loads(s2, layer, " sc1"): emit(q, l)
        return retry_parts(f"{name}_{s}", [f"v_max3_u32 v9, v{r}, v{r+4}, v{r+8}", f"v_max_u32 v9, v9, v{r+12}", "v_cmp_eq_u32 vcc, -1, v9"], rel, wtags)
    for x in chk(0, H0): emit(b, x)
    stamp(b, name + "_first")
    pend = [l for s in range(H0, R2 - 1) for l in h_loads(s, layer)]
    for s in range(14):
        g = {}
        ld = h_loads(s + R2 - 1, layer) if s + R2 - 1 < 14 and s + R2 - 1 >= H0 else []
        if pend:
            pend += ld
            put(g, 0, pend[:8], 1, 2); pend = pend[8:]
        else: put(g, 0, ld, 1, 4)
        for gap, items, per, st in extra.get(s, []): put(g, gap, items, per, st)
        if s + 1 < 14: put(g, 11, chk(s + 1, s + R2))
        gaps(b, mf16(ACC, s*16, HRS[s % R2], s == 0, ka='a'), g)
        if s in (2, 6, 10): stamp(b, f"{name}_s{s}")
    stamp(b, name + "_main")


def ssq_setup(buf):
    return ["v_or_b32 v13, s3, v4", "v_cmp_eq_u32 s[56:57], 0, v13", "v_lshl_add_u32 v13, v4, 2, v250",
            f"s_lshl_b32 s55, s{SB}, 8", f"s_lshl_b32 s58, s{SJ}, 13", "s_add_u32 s55, s55, s58", f"s_add_u32 s55, s55, {buf}",
            "v_lshl_add_u32 v14, v1, 2, v2", f"v_add_u32 v14, {L_SQ}, v14"]
def store_xc(blk, buf, r, acc=ACC):
    blk.I(f"s_add_u32 s53, s11, {buf}")
    for e in range(2):
        for t in range(4): blk.I(f"v_cvt_pk_bf16_f32 v{r+4*e+t}, v{acc+4*t+2*e}, v{acc+4*t+2*e+1}")
        blk.I(f"buffer_store_dwordx4 {vr(r+4*e,4)}, v{VT}, {S4(WS)}, s53 offen offset:{256*e} sc1", tag="xst")
def ssq_out(b, name, Q, pre=None):
    for t in range(4):
        a = ACC + 4*t
        b.I(f"v_cndmask_b32 v{a+1}, v{a+1}, 0, s[56:57]")
        b.I(f"v_mul_f32 v{Q+t}, v{a}, v{a}")
    for r in range(1, 4):
        for t in range(4): b.I(f"v_fmac_f32 v{Q+t}, v{ACC+4*t+r}, v{ACC+4*t+r}")
    emit_all(b, rowsum4(Q))
    b.I(f"ds_write_b32 v14, v{Q}")
    if pre: pre(b)
    b.barrier()
    def f(blk):
        blk.I(f"ds_read_b128 {vr(Q+4,4)}, v14")
        blk.I(f"v_pk_add_f32 {vr(Q+4,2)}, {vr(Q+4,2)}, {vr(Q+6,2)}"); blk.I(f"v_add_f32 v{Q+4}, v{Q+4}, v{Q+5}")
        blk.I(f"buffer_store_dword v{Q+4}, v13, {S4(WS)}, s55 offen sc1")
    wave_only(b, name, f)
def tag_load(r): return (f"buffer_load_dwordx2 {vr(r,2)}, off, {S4(DBG)}, 0 sc1", "tag")
def tag_wait(blk, name, r, n):
    blk.raw(f"    s_waitcnt vmcnt({n})")
    retry(blk, name, [f"v_cmp_eq_u32 vcc, 0, v{r}"], lambda q: (q.I("s_sleep 2"), emit(q, tag_load(r))))
def h_poison(sc):
    o = []
    for h in range(2):
        for i in range(4):
            x = (f"buffer_store_dwordx4 {PF}, v2, {S4(WS)}, s99 offen offset:{1024*i}{sc}", "pfh")
            o.append(atom(f"s_add_u32 s99, s61, {H1 + 4096*h}", x))
    return o
def h_poison_far(name):
    def f(blk):
        blk.I("s_cmp_lg_u32 s10, 0"); blk.I(f"s_cbranch_scc1 L_far_{name}")
        blk.label(f"L_near_{name}")
        v = Block(); v.label(f"L_far_{name}")
        emit_all(v, h_poison(" sc1"))
        v.I("s_waitcnt vmcnt(0)"); v.I(f"s_branch L_near_{name}")
        slow_blocks.append(v)
    return f
def sync(tag, lg=False):
    def f(blk):
        for t in (tag if isinstance(tag, list) else [tag]): blk.wait_vm_tag(t)
        blk.barrier(lg=lg)
    return f

NX1 = opt('nx1', 10)
NW1 = opt('nw1', 8)
def kernel():
    b = Block()
    stamp(b, "start")
    b.I("s_load_dwordx16 s[4:19], s[0:1], 0")
    b.I("s_load_dwordx4 s[20:23], s[0:1], 64")
    b.I("s_load_dwordx2 s[24:25], s[0:1], 80")
    pend = list(b.lg)
    b.I("v_lshrrev_b32 v1, 6, v0")
    b.I("v_and_b32 v2, 63, v0")
    b.I(f"v_readfirstlane_b32 s{SW}, v1")
    b.I("v_and_b32 v3, 15, v0")
    b.I("v_lshrrev_b32 v4, 4, v2")
    b.I("v_lshlrev_b32 v2, 4, v2")
    b.I("s_cmp_ge_u32 s2, 224")
    b.I("s_cbranch_scc1 L_helper")
    b.I(f"s_mov_b32 s{SBUD}, 30000")
    tab_srd(b, T3, KNAME, None, "L_code_end-" + KNAME)
    b.I(f"s_lshr_b32 s{SI}, s2, 3"); b.I(f"s_and_b32 s{SX}, s2, 7")
    b.I(f"s_lshl_b32 s53, s{SI}, 2"); b.I(f"s_add_u32 s53, s53, s{SW}"); b.I("s_lshl_b32 s53, s53, 10")
    b.I("v_add_u32 v9, s53, v2")
    b.I(f"buffer_load_dwordx4 v[244:247], v9, {S4(T3)}, 0 offen")
    div7(b, SQ, SJ, SI)
    b.I(f"s_lshl_b32 s{SB}, s{SX}, 2"); b.I(f"s_add_u32 s{SB}, s{SB}, s{SQ}")
    b.I(f"s_lshl_b32 s3, s{SJ}, 2"); b.I(f"s_add_u32 s3, s3, s{SW}")
    VX, VW2, VW1, VWW = 172, 173, 174, 175
    RX, RXO, RW1 = 164, 166, 188
    KS, TW = 80, 64
    sc = [f"s_lshl_b32 s{KS}, s{SJ}, 7"]
    for k in range(7):
        sc += [f"s_add_u32 s{KS+2*k+1}, s{KS+2*k}, 64"]
        if k < 6: sc += [f"s_add_u32 s{KS+2*k+2}, s{KS+2*k}, 128", atom(f"s_cmp_eq_u32 s{KS+2*k+2}, 896", f"s_cselect_b32 s{KS+2*k+2}, 0, s{KS+2*k+2}")]
    sc += [lambda blk: s0_of_B(blk, 78, SB, 79), "s_mul_i32 s78, s78, 896", f"s_sub_u32 s79, {S*D*2}, s78", f"s_lshl_b32 s94, s{SW}, 10"]
    va = ["v_lshrrev_b32 v9, 6, v2", "v_and_b32 v10, 2, v4", "v_xor_b32 v10, v3, v10", "v_and_b32 v10, 3, v10", "v_lshlrev_b32 v10, 4, v10",
          "v_lshl_add_u32 v11, v1, 5, v9", f"v_mad_u32_u24 v{VX}, v11, s55, v10"]
    b.I("s_movk_i32 s55, 896"); b.I(f"s_mov_b32 s59, {LW1}")
    qg = qgen()
    Q0 = opt('q0', 40)
    emit_all(b, mix(sc, va + qg[:Q0]))
    stamp(b, "qset")
    srd(b, T2, 4, "s78", "s79")
    def wdm(a): return atom(f"s_add_u32 m0, s94, {LWW + a*4096}", (f"buffer_load_dwordx4 v{VWW}, {S4((T1, T3)[a])}, s68 offen lds", "W"))
    def xd(i): return atom(f"s_add_u32 m0, s94, {LX + i*4096}", (f"buffer_load_dwordx4 v{VX}, {S4(T2)}, s{KS+i} offen lds", ("x", i)))
    def ad(i): return atom(f"s_add_u32 m0, s94, {LW1 + i*4096}", f"s_mul_i32 s53, s{KS+i}, 1792", (f"buffer_load_dwordx4 v{VW1}, {S4(TW)}, s53 offen lds", ("a", i)))
    def cd(i): return atom(f"s_add_u32 m0, s9, {LW2 + i*4096}", (f"buffer_load_dwordx4 v{VW2}, {S4(T3)}, s{KS+i} offen lds", ("c", i)))
    NX1 = opt('nx1', 10)
    for i in range(NX1): emit(b, xd(i))
    stamp(b, "xiss")
    sc = [lambda blk: srd(blk, T1, 6, None, S*225*2), lambda blk: srd(blk, T3, 8, None, S*225*2), lambda blk: srd(blk, WS, 24, None, WS_BYTES), lambda blk: srd(blk, DBG, 22, None, 256),
          f"s_lshr_b32 s68, s{SB}, 3", "s_lshl_b32 s68, s68, 4", f"s_and_b32 s58, s{SB}, 7", "s_lshl_b32 s58, s58, 8", "s_add_u32 s68, s68, s58",
          f"s_lshl_b32 s58, s{SW}, 6", "s_add_u32 s68, s68, s58", "s_mul_i32 s68, s68, 450", f"s_lshl_b32 s58, s{SJ}, 6", "s_add_u32 s68, s68, s58",
          "s_lshl_b32 s58, s3, 11", f"s_mul_i32 s11, s{SB}, {BS}", "s_add_u32 s11, s11, s58",
          f"s_lshl_b32 s69, s{SB}, 8", "s_lshl_b32 s58, s3, 13", "s_add_u32 s69, s69, s58", f"s_add_u32 s69, s69, {RS0}",
          f"s_lshl_b32 s58, s{SB}, 7", lambda blk: srd(blk, TW, 12, "s58", WSZ), f"s_sub_u32 s{TW+2}, s{TW+2}, s58",
          atom(f"s_cmp_lt_u32 s{SB}, 28", f"s_cselect_b32 s{TW+2}, s{TW+2}, 0"),
          "s_lshl_b32 s70, s3, 16", f"s_lshl_b32 s71, s{SB}, 8", "s_add_u32 s70, s70, s71", f"s_add_u32 s70, s70, {WT}", "s_add_u32 s71, s70, 8192",
          atom("s_cmp_eq_u32 s3, 0", "s_cselect_b32 s72, 0xffff0000, -1"),
          "s_mov_b32 s62, 0x05040100", "s_mov_b32 s63, 0x07060302",
          "s_mov_b32 s74, 0xaaaaaaaa", "s_mov_b32 s75, s74", "s_mov_b32 s76, 0xcccccccc", "s_mov_b32 s77, s76",
          "s_getreg_b32 s60, hwreg(HW_REG_XCC_ID, 0, 4)",
          f"s_lshl_b32 s97, s{SJ}, 5", f"s_add_u32 s97, s97, s{SB}", "s_lshl_b32 s97, s97, 5", f"s_add_u32 s97, s97, {F2}",
          "s_lshl_b32 s73, s3, 5", f"s_add_u32 s73, s73, s{SB}", "s_lshl_b32 s73, s73, 5", f"s_add_u32 s73, s73, {ARR}",
          f"s_lshl_b32 s96, s{SB}, 5", "s_add_u32 s96, s96, s3", "s_lshl_b32 s96, s96, 5", f"s_add_u32 s96, s96, {F1}"]
    va = [f"v_mul_u32_u24 v{VWW}, 450, v9", "v_and_b32 v11, 0x30, v2", f"v_add_u32 v{VWW}, v{VWW}, v11",
          "v_lshl_add_u32 v11, v1, 4, v9", f"v_mad_u32_u24 v{VW2}, v11, s55, v10",
          "v_lshrrev_b32 v11, 7, v2", "v_lshl_add_u32 v11, v1, 3, v11", f"v_mul_u32_u24 v{VW1}, 3584, v11", "v_and_b32 v11, 1, v1", "v_and_b32 v12, 1, v4", "v_lshl_add_u32 v11, v11, 1, v12",
          "v_lshlrev_b32 v11, 5, v11", "v_xor_b32 v11, v11, v2", "v_and_b32 v11, 0x70, v11", f"v_add_u32 v{VW1}, v{VW1}, v11",
          "v_lshrrev_b32 v9, 2, v3", "v_and_b32 v10, 2, v9", "v_xor_b32 v10, v10, v4", "v_lshlrev_b32 v10, 4, v10", f"v_lshl_add_u32 v{RX}, v3, 6, v10",
          f"v_lshl_add_u32 v{RXO}, v1, 10, v{RX}", "v_lshlrev_b32 v250, 4, v3", f"v_lshl_add_u32 v{VT}, v4, 9, v250"] + [f"v_mov_b32 v{160+i}, 0x3f803f80" for i in range(4)]
    emit_all(b, mix(sc, va + qg[Q0:]))
    stamp(b, "qgen")
    va = ["v_lshl_add_u32 v9, v4, 3, v9", "v_lshlrev_b32 v9, 7, v9", "v_and_b32 v10, 3, v3", "v_lshl_add_u32 v9, v10, 3, v9",
          "v_lshrrev_b32 v10, 2, v2", "v_and_b32 v10, 0x60, v10", f"v_or3_b32 v{RW1}, v9, v10, s59"] + [f"v_xor_b32 v{RW1+nt}, {32*nt}, v{RW1}" for nt in range(1, 4)] + [
          "v_lshlrev_b32 v9, 6, v3", "v_lshl_add_u32 v9, v1, 4, v9", "v_lshl_add_u32 v9, v4, 2, v9", f"v_add_u32 v9, {LWW}, v9",
          "v_lshl_add_u32 v10, v4, 14, v250",
          "v_lshl_add_u32 v11, v1, 2, v250", f"v_add_u32 v11, {L_RS}, v11", f"v_add_u32 v165, {L_RS}, v2", "v_mov_b32 v14, s60"]
    AA, AS, FB, WB = 72, 88, 96, 144
    fr = lambda i, t: FB + (i % 3) * 16 + 4 * t
    fo = lambda i: 176 + (i % 3) * 4
    def rdA(i): return [f"ds_read_b128 {vr(fr(i,t),4)}, v{RX} offset:{LX + i*4096 + t*1024}" for t in range(4)] + [f"ds_read_b128 {vr(fo(i),4)}, v{RXO} offset:{LX + i*4096}"]
    def mfA(i):
        z = lambda a: '0' if i == 0 else a
        return [f"{MF} {vr(AA+4*t,4)}, {vr(QF+4*i,4)}, {vr(fr(i,t),4)}, {z(vr(AA+4*t,4))}" for t in range(4)] + \
               [f"{MF} {vr(AS,4)}, {vr(fo(i),4)}, {vr(fo(i),4)}, {z(vr(AS,4))}", f"{MF} {vr(AS+4,4)}, v[160:163], {vr(fo(i),4)}, {z(vr(AS+4,4))}"]
    mark = []
    def tagl(blk):
        mark.append(blk.vm[-1])
        wave_only(blk, "tg", lambda q: emit(q, tag_load(12)))
    NA0 = opt('na0', 2)
    dm = [xd(i) for i in range(NX1, 14)] + [tagl, wdm(0), wdm(1)] + [ad(i) for i in range(NA0)]
    XA = opt('xa', 4)
    emit(b, sync(("x", XA)))
    stamp(b, "x0")
    emit_all(b, rdA(0) + rdA(1))
    emit(b, dm.pop(0))
    for i in range(14):
        g = {}
        if i == XA - 1: put(g, 0, [sync(("x", NX1 - 1))])
        if i == NX1 - 2: put(g, 0, [sync(("x", 13)), st("x13")])
        if i + 2 < 14: put(g, 0, rdA(i + 2), last=5)
        put(g, 0, [f"v_accvgpr_write_b32 a{4*i+u}, v{QF+4*i+u}" for u in range(4)], last=5)
        for q in ((1, 5) if i & 1 == 0 else (3,)):
            if dm: put(g, q, [dm.pop(0)])
        if i >= 7: put(g, 4, va[3*(i-7):3*(i-6)], 2, last=5)
        gaps(b, mfA(i), g)
    assert not dm and len(va) <= 21
    stamp(b, "A_mfma")
    store_xc(b, XC0, WB, AA)
    b.I(f"v_cndmask_b32 v15, v{AS}, v{AS+1}, s[74:75]"); b.I(f"v_cndmask_b32 v{AS}, v{AS+2}, v{AS+3}, s[74:75]"); b.I(f"v_mul_f32 v{AS+4}, s56, v{AS+4}")
    b.I(f"v_cndmask_b32 v15, v15, v{AS}, s[76:77]"); b.I(f"v_mov_b32 v{AS+5}, {f32hex(EPS)}")
    b.I(f"v_fma_f32 v{AS+5}, -v{AS+4}, v{AS+4}, v{AS+5}"); b.I(f"v_fma_f32 v15, v15, s56, v{AS+5}"); b.I("v_rsq_f32 v15, v15")
    b.I("s_mov_b32 exec_lo, 0x00f0000f"); b.I("s_mov_b32 exec_hi, 0xf0000f00")
    b.I("ds_write_b32 v11, v15")
    b.I("s_mov_b64 exec, -1")
    def tagw(blk):
        n = len(b.vm) - 1 - b.vm.index(mark[0]) if mark[0] in b.vm else len(b.vm)
        tag_wait(blk, "tgw", 12, n)
        blk.I("ds_write_b64 v165, v[12:13] offset:1024")
        blk.wait_lg(0)
    wave_only(b, "tg2", tagw)
    stamp(b, "A_st")
    emit(b, sync("W", lg=True))
    stamp(b, "W_in")
    b.I(f"ds_read_b128 {vr(AS,4)}, v165")
    for a in range(2):
        for r in range(4): b.I(f"ds_read_b32 v{FB+4*a+r}, v9 offset:{a*4096 + r*1024}")
    b.I("ds_read_b64 v[12:13], v165 offset:1024")
    b.I("s_mov_b64 exec, 0xffff"); b.I(f"buffer_store_dwordx4 {vr(AS,4)}, v2, {S4(WS)}, s69 offen sc1", tag="wt"); b.I("s_mov_b64 exec, -1")
    for e in range(2):
        for r in range(4): b.I(f"v_perm_b32 v{WB+8+4*e+r}, v{FB+4+r}, v{FB+r}, s{62+e}")
        if e == 0: b.I("s_mov_b32 exec_lo, s72")
        b.I(f"buffer_store_dwordx4 {vr(WB+8+4*e,4)}, v10, {S4(WS)}, s{70+e} offen sc1", tag="wt")
        if e == 0: b.I("s_mov_b32 exec_lo, -1")
    stamp(b, "wt_st")
    ct = coltab(16)
    CT0 = opt('ct0', 60)
    emit_all(b, mix([ad(i) for i in range(NA0, 14)], ct[:CT0]))
    stamp(b, "a_iss")
    def rdB(i): return [f"ds_read_b64_tr_b16 {vr(fr(i,nt)+2*hh,2)}, v{RW1+nt} offset:{i*4096 + hh*512}" for nt in range(4) for hh in range(2)]
    AB = opt('ab', 6)
    emit(b, sync(("a", AB)))
    emit_all(b, rdB(0) + rdB(1))
    stamp(b, "B_in")
    def post(tag, n, so):
        def f(blk):
            blk.wait_vm_tag(tag)
            blk.I("s_mov_b64 exec, 1"); blk.I(f"buffer_store_dwordx{n} {vr(12,n)}, off, {S4(WS)}, {so} sc1"); blk.I("s_mov_b64 exec, -1")
        return f
    aset = [f"v_mov_b32 v{168+i}, -1" for i in range(4)] + [
            f"s_lshl_b32 s58, s{SX}, 2", f"s_add_u32 s58, s58, s{SW}", "s_mul_i32 s58, s58, 56",
            f"s_lshl_b32 s61, s{SI}, 1", "s_add_u32 s61, s61, s58", "s_lshl_b32 s61, s61, 12",
            f"s_add_u32 s70, s11, {XC1}", "s_lshr_b32 s71, s11, 3", f"s_add_u32 s71, s71, {RSP1}",
            f"s_lshl_b32 s78, s{SI}, 13", f"s_lshl_b32 s68, s{SI}, 10", f"s_add_u32 s68, s68, {ARR}",
            f"v_and_b32 v{V32}, 31, v0", f"v_lshlrev_b32 v{V32}, 5, v{V32}",
            atom("s_cmp_eq_u32 s2, 0", f"s_cselect_b32 s69, {31*1024}, 0"), "v_lshrrev_b32 v15, 1, v4", f"v_mad_u32_u24 v15, v15, s69, v{V32}",
            f"v_readfirstlane_b32 s{NON}, v12", f"v_readfirstlane_b32 s{NON+1}, v13",
            f"s_mul_i32 s54, s{SW}, {8*BS}", "s_lshl_b32 s58, s2, 8", "s_add_u32 s54, s54, s58",
            "s_lshl_b32 s95, s2, 13", f"s_lshl_b32 s79, s{SW}, 11", "s_add_u32 s95, s95, s79", f"s_add_u32 s95, s95, {WT}",
            "s_add_u32 s79, s79, s78", f"s_add_u32 s79, s79, {RS0}", f"s_add_u32 s78, s54, {XC0}",
            "v_lshrrev_b32 v9, 1, v1", "v_lshl_add_u32 v9, v9, 12, v2", "v_and_b32 v10, 1, v1", "v_lshl_add_u32 v9, v10, 3, v9", f"v_add_u32 v9, {LWW}, v9",
            "v_lshl_add_u32 v10, v1, 11, v2", f"v_add_u32 v10, {LWW}, v10",
            "v_or_b32 v11, s3, v4", "v_cmp_eq_u32 s[74:75], 0, v11",
            lambda blk: srd(blk, T2, 24, W1P, WSZ), atom(f"s_cmp_lt_u32 s{SB}, 28", f"s_cselect_b32 s{T2+2}, s{T2+2}, 0"),
            f"v_mul_u32_u24 v248, {BS}, v4", "v_add_u32 v248, v250, v248", f"v_add_u32 v249, {4*BS}, v248"]
    px = [(f"buffer_store_dwordx4 {PF}, v2, {S4(WS)}, s70 offen offset:{1024*i} sc1", "px") for i in range(2)] + \
         [atom("s_mov_b64 exec, 0xffff", (f"buffer_store_dwordx4 {PF}, v2, {S4(WS)}, s71 offen sc1", "px"), "s_mov_b64 exec, -1")]
    hp = px + h_poison("")
    AQ = opt('aq', 0); AP = opt('ap', 10)
    for i in range(14):
        g = {}
        if i == AB - 1: put(g, 0, [sync(("a", 13))])
        if i + 2 < 14: put(g, 0, rdB(i + 2), 2, last=3)
        if i == AQ: put(g, 0, [post("wt", 3, "s73"), st("arr")])
        if i == AP: put(g, 2, [flag_issue("s68", 15)])
        elif i >= 4 and hp: put(g, 2, [hp.pop(0)])
        put(g, 0, aset[4*i:4*i+4], last=3)
        gaps(b, [f"{MF} {vr(AA+4*t,4)}, {vr(4*i,4,'a')}, {vr(fr(i,t),4)}, {'0' if i == 0 else vr(AA+4*t,4)}" for t in range(4)], g)
    assert len(aset) <= 56
    stamp(b, "B_mfma")
    for nt in range(4):
        emit_all(b, [f"v_cndmask_b32 v{AA+4*nt+1}, v{AA+4*nt+1}, 0, s[74:75]", f"v_cvt_pk_bf16_f32 v{AS+2*nt+1}, v{AA+4*nt+2}, v{AA+4*nt+3}",
               f"v_cvt_pk_bf16_f32 v{AS+2*nt}, v{AA+4*nt}, v{AA+4*nt+1}", f"ds_write_b64 v9, {vr(AS+2*nt,2)} offset:{nt*1024}"])
    b.barrier()
    for u in range(2): b.I(f"ds_read_b128 {vr(AA+4*u,4)}, v10 offset:{u*1024}")
    for m in range(4): b.I(f"v_xor_b32 v{5+m}, {m}, v1"); b.I(f"v_lshl_add_u32 v{5+m}, v{5+m}, 10, v2")
    for u in range(2): b.I(f"buffer_store_dwordx4 {vr(AA+4*u,4)}, v2, {S4(T2)}, s11 offen offset:{u*1024} sc1", tag="w1p")
    stamp(b, "B_st")
    if AP >= 14: emit(b, flag_issue("s68", 15))
    cs = [f"s_sub_u32 s53, s{SB}, 4", f"s_mul_i32 s53, s53, {64*896}", lambda blk: srd(blk, T3, 16, "s53", 64*896),
          atom(f"s_cmp_lt_u32 s{SB}, 4", f"s_cselect_b32 s{T3}, s18, s{T3}", f"s_cselect_b32 s{T3+1}, s19, s{T3+1}", f"s_cselect_b32 s{T3+2}, 896, s{T3+2}"),
          lambda blk: srd(blk, T1, 14, None, F*2), f"s_mov_b32 s{T2+2}, {WSZ}", "s_mov_b32 s9, s94",
          f"s_lshl_b32 s4, s{SI}, 10", f"s_lshl_b32 s5, s{SX}, 12", "s_add_u32 s5, s5, s94", f"s_mov_b32 s6, {F1}"]
    emit_all(b, mix(cs + hp, ct[CT0:]))
    b.I("v_mov_b32 v19, s4"); b.I("v_mov_b32 v23, s5"); b.I("v_cmp_gt_u32 vcc, 2, v4"); b.I("v_cndmask_b32 v19, v23, v19, vcc")
    b.I(f"v_min_u32 v23, {27*32}, v{V32}"); b.I("v_add_u32 v19, v19, v23")
    b.I(f"s_lshl_b32 s4, s{SI}, 5"); b.I(f"s_add_u32 s4, s4, {F1}"); b.I(f"v_lshlrev_b32 v23, 5, v{V32}")
    b.I(f"s_lshl_b32 s5, s{SX}, 7"); b.I(f"s_add_u32 s5, s5, {ARR}"); b.I(f"s_lshl_b32 s7, s{SI}, 7")
    b.I("v_lshrrev_b32 v17, 6, v2"); b.I("v_min_u32 v17, 6, v17"); b.I("v_lshlrev_b32 v17, 12, v17"); b.I("v_and_b32 v18, 0x30, v2"); b.I("v_lshl_add_u32 v17, v18, 1, v17")
    stamp(b, "ctab")
    flag_check(b, "arr", "s68", 15)
    stamp(b, "achk")
    emit_all(b, [(x[0].replace(" sc1", PSC), x[1]) for x in col_loads(0)] + col_wt())
    emit(b, post("w1p", 2, "s96"))
    stamp(b, "f1_st")
    gl = (f"buffer_load_dwordx3 v[20:22], v17, {S4(WS)}, s5 offen sc1", "poll")
    gchk = retry_parts("grp", [f"v_cmp_ne_u64 vcc, s[{NON}:{NON+1}], v[20:21]"], lambda q: (q.I("s_sleep 2"), emit(q, gl))) + \
           ["v_cmp_ne_u32 vcc, v14, v22", atom("s_cmp_lg_u64 vcc, 0", f"s_cselect_b32 s10, 1, {FORCE_SC}")]
    go = g1_offsets() + [f"s_mul_i32 s8, s{SI}, {BS}", "s_add_u32 s8, s8, s9", "s_sub_u32 s8, s8, s94"]
    def w1d(s): return atom(f"s_add_u32 m0, s9, {L_W1 + s*4096}", f"s_add_u32 s53, s8, s{O1+s}", (f"buffer_load_dwordx4 v2, {S4(T2)}, s53 offen{PSC} lds", ("w1d", s)))
    wd = [w1d(s) for s in range(14)]
    cdm = [cd(i) for i in range(14)]
    b1l = [f"buffer_load_dwordx2 {vr(224+2*m,2,'a')}, v12, {S4(T1)}, s7 offen offset:{32*m}" for m in range(4)]
    def c1_st(blk):
        flag_check(blk, "f1c", "s4", 23, r=24)
        emit(blk, h_poison_far("c1"))
        blk.wait_vm_tag("pfh")
    NC1 = opt('nc1', 6)
    col(b, "c1", XC1, 0, L_R0,
        pre_in=lambda blk: emit_all(blk, cdm[:2] + [gl] + go),
        post_b1=lambda blk: emit_all(blk, [flag_issue("s6", 19), flag_issue("s4", 23, 24)]),
        f1=cdm[2:NC1], f3=gchk, f4=[flag_parts("f1", "s6", 19)[0]], f5=flag_parts("f1", "s6", 19)[1:] + [st("f1")] + wd[:2], f6=wd[2:4],
        lfill=wd[4:NW1], pre_st=c1_st)
    AC = 16
    RC = 9
    def rdC(i): return [f"ds_read_b128 {vr(192+(i%3)*16+4*m,4)}, v{RC} offset:{i*4096 + m*1024}" for m in range(4)]
    cset = ["v_lshrrev_b32 v9, 2, v3", "v_and_b32 v10, 2, v9", "v_xor_b32 v10, v10, v4", "v_lshlrev_b32 v10, 4, v10", f"v_lshl_add_u32 v9, v3, 6, v10", f"v_add_u32 v9, {LW2}, v9",
            f"s_sub_u32 s56, s{SB}, 4", "s_lshl_b32 s56, s56, 1", f"s_mul_i32 s57, s{SJ}, 56", "s_add_u32 s56, s56, s57", "s_lshl_b32 s56, s56, 12", "s_add_u32 s56, s56, s9",
            "s_lshl_b32 s58, s3, 6", "v_lshlrev_b32 v12, 3, v4", "v_lshlrev_b32 v11, 2, v3", "v_lshl_add_u32 v11, v4, 12, v11", lambda blk: srd(blk, XS, 24, XC1, XSZ)]
    emit_all(b, mix(cdm[NC1:], cset))
    emit(b, sync(("c", NC1 - 1)))
    emit_all(b, rdC(0) + rdC(1))
    stamp(b, "C_in")
    vm = wd[NW1:] + b1l + [l for s in range(W0) for l in g1_loads(s)]
    XL = opt('xl', 14)
    for i in range(14):
        g = {}
        if i == NC1 - 2: put(g, 0, [sync(("c", 13))])
        if i + 2 < 14: put(g, 0, rdC(i + 2), last=3)
        if i < XL: put(g, 1, [vm.pop(0)])
        if i == 12: put(g, 2, [lambda blk: srd(blk, T3, 24, W2P, WSZ), atom(f"s_cmp_lt_u32 s{SB}, 4", f"s_cselect_b32 s{T3+2}, 0, s{T3+2}", "s_cselect_b32 s56, 0, s56"), "s_add_u32 s57, s56, 4096"], last=3)
        gaps(b, [f"{MF} {vr(AC+4*m,4)}, {vr(192+(i%3)*16+4*m,4)}, {vr(4*i,4,'a')}, {'0' if i == 0 else vr(AC+4*m,4)}" for m in range(4)], g)
    stamp(b, "C_mfma")
    emit_all(b, mix(vm, [f"v_cvt_pk_bf16_f32 v{32+u}, v{AC+2*u}, v{AC+2*u+1}" for u in range(8)]))
    srd(b, T1, 24, B2P, 1792); b.I(f"s_cmp_eq_u32 s{SB}, 0"); b.I(f"s_cselect_b32 s{T1+2}, s{T1+2}, 0")
    b.I(f"buffer_store_dword v{AC}, v11, {S4(T1)}, s58 offen sc1", tag="w2p")
    for h in range(2): b.I(f"buffer_store_dwordx4 {vr(32+4*h,4)}, v2, {S4(T3)}, s{56+h} offen sc1", tag="w2p")
    emit_all(b, g1_pre(RSP1))
    emit(b, sync(("w1d", 13)))
    stamp(b, "w1_rdy")
    def g2_srd(t, mul, buf):
        return [atom(f"s_mul_i32 s53, s{mul}, {56*4096}", f"s_add_u32 s53, s53, {buf}", lambda blk: srd(blk, t, 24, "s53", 56*4096))]
    w2 = w2_loads(0, T1)
    go2 = g2_offsets()
    def cdone(blk):
        blk.wait_vm_tag("w2p"); blk.barrier(lg=False); flag_set(blk, "fs2", "s97", t=10)
    F2S = opt('f2s', 8)
    ex = {2: [(1, g2_srd(T1, SJ, W2P) + g2_srd(T2, SB, H1) + [f"s_lshl_b32 s78, s{SJ}, 10", f"s_add_u32 s78, s78, {F2}"], 1, 3), (15, [cdone], 1, 1)],
          3: [(1, go2[:14], 1, 1)], 4: [(0, go2[14:28], 1, 1)], 5: [(0, go2[28:], 1, 1)]}
    ex.setdefault(F2S - 2, []).append((2, [flag_issue("s78", V32)], 1, 1))
    ex.setdefault(F2S, []).append((14, flag_parts("f2", "s78", V32), 2, 1))
    for s in range(F2S + 1, 14): ex.setdefault(s, []).append((0, w2[5*(s-F2S-1):5*(s-F2S)], 1, 3))
    w2 = w2[5*(13-F2S):]
    g1(b, "g1a", False, ex)
    hl = [l for s in range(H0) for l in h_loads(s, 0)]
    g1_epilogue(b, "g1a", H1, [w2[:16], w2[16:-8] + hl[:12]])
    emit_all(b, hl[12:])
    RS_ = 112
    res_loads = [f"s_add_u32 s58, s11, {XC1}"] + [f"buffer_load_dwordx4 {vr(RS_+4*e,4)}, v{VT}, {S4(WS)}, s58 offen offset:{256*e} sc1" for e in range(2)] + \
                [atom("s_lshl_b32 s53, s3, 6", f"s_add_u32 s53, s53, {B2P}", "v_lshlrev_b32 v15, 4, v4", f"buffer_load_dwordx4 {vr(RS_+8,4)}, v15, {S4(WS)}, s53 offen sc1")]
    w2t = w2_loads(1, T3)
    ex = {8: [(2, [f"s_mov_b32 s79, {HA}", flag_issue("s79", V32)] + g2_srd(T3, SJ, W2T), 2, 1)],
          9: [(0, res_loads, 1, 4)],
          10: [(9, flag_parts("ha", "s79", V32), 2, 1)],
          11: [(0, w2t[0:4], 1, 4)], 12: [(0, w2t[4:8], 1, 4)], 13: [(0, w2t[8:12], 1, 4), (2, col_setup(XC2, SSQ2), 3, 1)]}
    for s in range(8): ex.setdefault(s, []).append((6, [w2[s - 8]], 1, 1))
    g2_main(b, "g2a", 0, ex)
    def midG(blk):
        for t in range(4):
            for e in range(2):
                blk.I(f"v_lshlrev_b32 v{80+4*t+2*e}, 16, v{RS_+4*e+t}"); blk.I(f"v_and_b32 v{81+4*t+2*e}, 0xffff0000, v{RS_+4*e+t}")
            for h in range(2): blk.I(f"v_pk_add_f32 {vr(80+4*t+2*h,2)}, {vr(80+4*t+2*h,2)}, {vr(RS_+8+2*h,2)}")
        for t in range(4):
            for h in range(2): blk.I(f"v_pk_add_f32 {vr(ACC+4*t+2*h,2)}, {vr(ACC+4*t+2*h,2)}, {vr(80+4*t+2*h,2)}")
        emit_all(blk, ssq_setup(SSQ2))
    reduce4(b, L_R0, 32, 9, mid=midG)
    store_xc(b, XC2, 144)
    ssq_out(b, "sq2", 80)
    stamp(b, "g2a_epi")
    ct = coltab(32) + [f"v_mov_b32 v{168+i}, -1" for i in range(4)]
    interleave(b, ct[:70], col_wt() + w2t[12:18])
    b.wait_vm_tag("xst")
    stamp(b, "g2a_ack")
    interleave(b, ct[70:], col_loads(7))
    sep = H2 != H1
    def c2_st(blk):
        flag_check(blk, "hb", "s4", V32)
        if not sep: emit(blk, h_poison_far("c2")); blk.wait_vm_tag("pfh")
    col(b, "c2", XC3, 7, L_R1 + 16384, f1=(h_poison("") if not sep else []), f2=[atom(f"s_mov_b32 s4, {HB}", flag_issue("s4", V32))] + w2t[18:21], f3=w2t[21:23], f4=w2t[23:26], f5=w2t[26:29], f6=w2t[29:32],
        lfill=w2t[32:38], pre_st=c2_st)
    srd(b, XS, 24, XC3, XSZ)
    qt = qtgen(16)
    interleave(b, qt, w2t[38:46])
    emit_all(b, g1_pre(RSP3))
    b.wait_vm_tag("cst")
    stamp(b, "c2_ack")
    for s in range(W0): emit_all(b, g1_loads(s))
    b.barrier()
    ex = {8: [(18, g2_srd(T2, SB, H2), 9, 1)],
          9: [(0, w2t[46:51], 1, 4)], 10: [(0, w2t[51:56], 1, 4)],
          11: [(3, [f"s_lshl_b32 s58, s{SX}, 2", f"s_add_u32 s58, s58, s{SW}", "s_mul_i32 s58, s58, 7", f"s_lshr_b32 s59, s{SI}, 2", "s_add_u32 s58, s58, s59", "s_lshl_b32 s58, s58, 14",
                    f"s_and_b32 s59, s{SI}, 3", "s_lshl_b32 s59, s59, 10", "s_add_u32 s58, s58, s59", f"s_add_u32 s58, s58, {RES}"], 3, 1)]}
    def rst(t): return atom(f"s_add_u32 s53, s58, {4096*t}", f"buffer_store_dwordx4 {vr(EA+4*t,4,'a')}, v2, {S4(WS)}, s53 offen sc1")
    ex[13] = [(8, [rst(t) for t in range(4)], 1, 3)]
    g1(b, "g1b", True, ex)
    hl = [l for s in range(H0) for l in h_loads(s, 1)]
    g1_epilogue(b, "g1b", H2, [[], hl[:12]])
    emit_all(b, hl[12:])
    RF = 208
    fin_loads = [lambda blk: (srd(blk, T3, 18, None, 896), blk.I(f"s_lshl_b32 s53, s{SJ}, 7"), blk.I("v_lshlrev_b32 v15, 5, v4"),
                              [blk.I(f"buffer_load_dwordx4 {vr(RS_+4*e,4)}, v15, {S4(T3)}, s53 offen offset:{16*e}") for e in range(2)])]
    rl = [(f"buffer_load_dwordx4 {vr(RF+4*m,4)}, v2, {S4(WS)}, s58 offen offset:{1024*m} sc1", "rf") for m in range(4)]
    rsetup = [f"s_mul_i32 s58, s{SB}, 7", f"s_add_u32 s58, s58, s{SJ}", "s_lshl_b32 s58, s58, 2", f"s_add_u32 s58, s58, s{SW}", "s_lshl_b32 s58, s58, 12", f"s_add_u32 s58, s58, {RES}"]
    rck = retry_parts("rf", [f"v_max3_u32 v10, v{RF}, v{RF+4}, v{RF+8}", f"v_max_u32 v10, v10, v{RF+12}", "v_cmp_eq_u32 vcc, -1, v10"], lambda q: emit_all(q, rl), ("rf",))
    fb = []
    for i in range(8): fb += [f"v_lshlrev_b32 v{224+2*i}, 16, v{RS_+i}", f"v_and_b32 v{225+2*i}, 0xffff0000, v{RS_+i}"]
    fa = [f"v_add_f32 v{RF+i}, v{RF+i}, v{224+i}" for i in range(16)]
    g2_main(b, "g2b", 1, {8: [(2, rsetup, 3, 1)], 9: [(0, rl, 1, 4)], 10: [(0, fin_loads, 1, 1)], 12: [(0, fb, 2, 1)], 13: [(0, rck, 1, 1), (4, fa, 2, 1)]})
    def midF(blk):
        for m in range(4):
            for h in range(2): blk.I(f"v_pk_add_f32 {vr(ACC+16*m+2*h,2)}, {vr(ACC+16*m+2*h,2)}, {vr(RF+4*m+2*h,2)}")
        s0_of_B(blk, 55, SB, 58)
        blk.I(f"s_lshl_b32 s58, s{SW}, 5"); blk.I("s_add_u32 s55, s55, s58"); blk.I("s_mul_i32 s55, s55, 896")
        blk.I(f"s_lshl_b32 s58, s{SJ}, 7"); blk.I("s_add_u32 s55, s55, s58")
        srd(blk, T3, 20, None, S*D*2)
        blk.I("v_mul_u32_u24 v13, 896, v3"); blk.I("v_lshl_add_u32 v13, v4, 5, v13")
    reduce4(b, L_R0, 96, 9, mode='t', mid=midF)
    for m in range(4):
        for h in range(2): b.I(f"v_cvt_pk_bf16_f32 v{144+2*m+h}, v{ACC+16*m+2*h}, v{ACC+16*m+2*h+1}")
    for e in range(2): b.I(f"buffer_store_dwordx4 {vr(144+4*e,4)}, v13, {S4(T3)}, s55 offen offset:{16*e}")
    stamp_flush(b)
    b.I("s_endpgm")
    main = b
    names = list(stamp_names)
    b = Block(); b.label("L_helper"); b.lg = list(pend)
    stamp_n[0] = 1
    b.I("s_cmp_ge_u32 s2, 256")
    b.I("s_cbranch_scc1 L_end")
    b.I("s_memrealtime s[56:57]")
    b.I(f"s_mov_b32 s{SBUD}, 30000")
    b.I(f"s_sub_u32 s{SB}, s2, 224")
    b.I(f"s_lshl_b32 s59, s{SB}, 2"); b.I(f"s_add_u32 s59, s59, s{SW}")
    b.I("s_lshl_b32 s58, s59, 8")
    for i in range(4): b.I(f"v_mov_b32 v{168+i}, -1")
    b.I(f"s_lshr_b32 s60, s{SB}, 3"); b.I("s_lshl_b32 s60, s60, 4")
    b.I(f"s_and_b32 s53, s{SB}, 7"); b.I("s_lshl_b32 s53, s53, 8"); b.I("s_add_u32 s60, s60, s53"); b.I("s_mul_i32 s60, s60, 450"); b.I("s_add_u32 s60, s60, 448")
    b.I("v_mul_u32_u24 v10, 450, v3")
    b.I(f"s_lshl_b32 s61, s{SB}, 8"); b.I(f"s_add_u32 s61, s61, {WT}")
    b.I(f"s_lshl_b32 s96, s{SB}, 5"); b.I(f"s_add_u32 s97, s96, {ARR + 31*1024}"); b.I(f"s_add_u32 s96, s96, {HA}")
    b.I("s_or_b32 s56, s56, 1"); b.I("v_mov_b32 v12, s56"); b.I("v_mov_b32 v13, s57"); b.I("v_mov_b32 v14, s58")
    srd(b, DBG, 22, None, 256)
    b.I("s_mov_b64 exec, 1")
    b.I(f"buffer_store_dwordx2 v[12:13], v14, {S4(DBG)}, 0 offen sc1")
    b.I("s_mov_b64 exec, -1")
    stamp(b, "h_tag")
    srd(b, WS, 24, None, WS_BYTES)
    def c224(blk):
        srd(blk, T1, 6, None, S*225*2); srd(blk, T3, 8, None, S*225*2)
        blk.I("s_mov_b64 exec, 0xffff")
        for r in range(4):
            if r: blk.I(f"s_add_u32 s60, s60, {64*450}")
            for a, T in enumerate((T1, T3)): blk.I(f"buffer_load_ushort v{16+4*a+r}, v10, {S4(T)}, s60 offen")
        for r in range(4): blk.I(f"v_lshl_or_b32 v{16+r}, v{20+r}, 16, v{16+r}")
        blk.I(f"buffer_store_dwordx4 v[16:19], v2, {S4(WS)}, s61 offen sc1")
        blk.I("s_mov_b64 exec, -1")
        emit(blk, tag_load(12))
        tag_wait(blk, "htw", 12, 0)
        blk.I("s_mov_b64 exec, 1"); blk.I(f"buffer_store_dwordx2 v[12:13], off, {S4(WS)}, s97 sc1"); blk.I("s_mov_b64 exec, -1")
        blk.I(f"v_readfirstlane_b32 s{NON}, v12"); blk.I(f"v_readfirstlane_b32 s{NON+1}, v13")
    wave_only(b, "c224", c224)
    stamp(b, "h_arr")
    def fill(blk, nm, base, nkb, u=4):
        blk.I(f"s_mul_i32 s53, s59, {nkb*1024}"); blk.I(f"s_add_u32 s53, s53, {base}")
        blk.I(f"s_mov_b32 s55, {nkb // u}")
        blk.label(f"L_{nm}")
        for i in range(u): blk.I(f"buffer_store_dwordx4 {PF}, v2, {S4(WS)}, s53 offen offset:{1024*i} sc1", tag=nm)
        blk.I(f"s_add_u32 s53, s53, {1024*u}"); blk.I("s_sub_u32 s55, s55, 1"); blk.I("s_cmp_lg_u32 s55, 0"); blk.I(f"s_cbranch_scc1 L_{nm}")
    def hflag(blk, off, nm):
        blk.wait_vm(0)
        blk.barrier()
        blk.I(f"s_add_u32 s53, s96, {off}")
        flag_set(blk, nm, "s53")
        stamp(blk, nm)
    def until(blk, nm, t):
        if not t: return
        blk.label(f"L_{nm}")
        blk.I("s_sleep 4"); blk.I("s_memrealtime s[62:63]"); blk.I("s_sub_u32 s62, s62, s56"); blk.I(f"s_cmp_lt_u32 s62, {t}"); blk.I(f"s_cbranch_scc1 L_{nm}")
    until(b, "hdb", opt('hdb', 400))
    srd(b, T2, 16, None, WSZ)
    srd(b, T3, 24, W2T, WSZ)
    b.I(f"s_mul_i32 s56, s{SW}, 7168")
    for rd in range(2):
        b.I(f"s_add_u32 s55, s{SB}, {32*rd}"); b.I("s_cmp_lt_u32 s55, 56"); b.I(f"s_cselect_b32 s{T2+2}, s{T2+2}, 0")
        b.I("s_mul_i32 s55, s55, 28672"); b.I("s_add_u32 s55, s55, s56")
        for u in range(7):
            b.I(f"s_add_u32 m0, s56, {rd*28672 + u*1024}")
            b.I(f"s_add_u32 s53, s55, {u*1024}")
            b.I(f"buffer_load_dwordx4 v2, {S4(T2)}, s53 offen lds")
    fill(b, "pfx2", XC2, 15, 3)
    b.I("v_lshrrev_b32 v10, 2, v3"); b.I("v_lshl_add_u32 v10, v4, 2, v10"); b.I("v_mul_u32_u24 v10, 896, v10")
    b.I("v_and_b32 v11, 3, v3"); b.I("v_lshl_add_u32 v10, v11, 5, v10")
    b.I("v_lshl_add_u32 v10, v1, 3, v10")
    b.I(f"s_lshl_b32 s57, s{SW}, 10")
    b.I("s_waitcnt vmcnt(15)")
    b.barrier()
    for rd in range(2):
        b.I(f"s_add_u32 s55, s{SB}, {32*rd}"); b.I("s_cmp_lt_u32 s55, 56"); b.I(f"s_cselect_b32 s{T3+2}, s{T3+2}, 0")
        b.I("s_lshl_b32 s55, s55, 12"); b.I("s_add_u32 s55, s55, s57")
        for J in range(7):
            for hh in range(2):
                b.I(f"ds_read_b64_tr_b16 {vr(16+rd*28+4*J+2*hh,2)}, v10 offset:{rd*28672+hh*14336+J*128}")
        for J in range(7):
            b.I(f"s_add_u32 s53, s55, {J*56*4096}")
            b.I(f"buffer_store_dwordx4 {vr(16+rd*28+4*J,4)}, v2, {S4(T3)}, s53 offen sc1")
    hflag(b, 0, "hfa")
    fill(b, "pfr", XC3, 42, 3)
    if H2 != H1: fill(b, "pfh2", H2, 56)
    hflag(b, 1024, "hfb")
    stamp_flush(b)
    b.label("L_end")
    b.I("s_endpgm")
    global NAMES
    NAMES = " ".join(names) + "\n" + "start " + " ".join(stamp_names[len(names):]) + "\n"
    body = main.text() + b.text() + "".join(s.text() for s in slow_blocks) + "L_code_end:\n"
    return kernel_text(KNAME, body, 256, 256, 102)

def main():
    hdr = open("interleave_layers__spectral_gfnet__mixer_channel_mlp__prompt.s.ref").read().split("; Override")[0]
    out = hdr + f"; @launch grid=(256,1,1) block=(256,1,1) lds={LDS_BYTES}\n"
    out += '.amdgcn_target "amdgcn-amd-amdhsa--gfx950"\n'
    out += kernel()
    dst = [a for a in sys.argv[1:] if not a.startswith('--')]
    fn = dst[0] if dst else "out5.s"
    open(fn, "w").write(out)
    if STAMPS: open(fn + ".names", "w").write(NAMES)
if __name__ == "__main__":
    main()
```
